```python
import torch

def _softmax(x, axis=-1):
    return torch.softmax(x, dim=axis)
def _gelu(x):
    return torch.nn.functional.gelu(x, approximate="tanh")
def _silu(x):
    return torch.nn.functional.silu(x)
def _sigmoid(x):
    return torch.sigmoid(x)
def _layernorm(x, axis=-1, eps=1e-5):
    m = x.mean(dim=axis, keepdim=True)
    v = x.var(dim=axis, keepdim=True, unbiased=False)
    return (x - m) / torch.sqrt(v + eps)
def _scatter_add(tgt, idx, src, axis=0):
    return tgt.clone().index_add_(axis, idx, src)
def _segment_sum(src, seg, n):
    out = torch.zeros((n,) + src.shape[1:], dtype=src.dtype)
    return out.index_add_(0, seg, src)
def _pad(x, pw):
    flat = tuple(v for pair in reversed(pw) for v in pair)
    return torch.nn.functional.pad(x, flat)

kernel_name = 'interleave_layers__sliding_block__glu_gated_geglu__prompt'

def setup_inputs():

    _w = (lambda a: (lambda t: t.to(torch.bfloat16) if t.is_floating_point() else t)(torch.as_tensor(a)))
    def _A_setup():
        B, S, D = 1, 2048, 640
        return {
            "x": _w((lambda *s: torch.randn(*s, dtype=torch.bfloat16) * 0.05)(B, S, D)),
            "wqkv": _w((lambda *s: torch.randn(*s, dtype=torch.bfloat16) * 0.05)(D, 3 * D)),
            "wo": _w((lambda *s: torch.randn(*s, dtype=torch.bfloat16) * 0.05)(D, D)),
        }
    _A_in = _A_setup()

    def _B_setup():
        B, S, Dm, Df = 1, 2048, 640, 1728
        return {
            "x": _w((lambda *s: torch.randn(*s, dtype=torch.bfloat16) * 0.05)(B, S, Dm)),
            "w_gate": _w((lambda *s: torch.randn(*s, dtype=torch.bfloat16) * 0.8)(Dm, Df) * (Dm ** -0.5)),
            "w_up": _w((lambda *s: torch.randn(*s, dtype=torch.bfloat16) * 0.8)(Dm, Df) * (Dm ** -0.5)),
            "w_down": _w((lambda *s: torch.randn(*s, dtype=torch.bfloat16) * 0.8)(Df, Dm) * (Df ** -0.5)),
        }
    _B_in = _B_setup()

    return {
        "A_x": _A_in["x"],
        "A_wqkv": _A_in["wqkv"],
        "A_wo": _A_in["wo"],
        "B_x": _B_in["x"],
        "B_w_gate": _B_in["w_gate"],
        "B_w_up": _B_in["w_up"],
        "B_w_down": _B_in["w_down"],
    }

def reference(A_x, A_wqkv, A_wo, B_x, B_w_gate, B_w_up, B_w_down):
    def _A_ref(x, wqkv, wo):
        B, S, D = x.shape
        H = 32; Dh = D // H; W = 256
        qkv = (lambda x, *d: x.permute(*d))((x @ wqkv).reshape(B, S, 3, H, Dh), 2, 0, 3, 1, 4)
        q, k, v = qkv[0], qkv[1], qkv[2]
        scores = torch.einsum("bhqd,bhkd->bhqk", q, k) * (Dh ** -0.5)
        idx = torch.arange(S)
        mask = (idx[:, None] - idx[None, :] >= 0) & (idx[:, None] - idx[None, :] < W)
        scores = torch.where(mask[None, None], scores, -1e9)
        p = _softmax(scores, axis=-1)
        o = torch.einsum("bhqk,bhkd->bhqd", p, v)
        return (lambda x, *d: x.permute(*d))(o, 0, 2, 1, 3).reshape(B, S, D) @ wo

    def _B_ref(x, w_gate, w_up, w_down):
        g = torch.einsum("bsd,df->bsf", x, w_gate)
        u = torch.einsum("bsd,df->bsf", x, w_up)
        h = _gelu(g) * u
        return torch.einsum("bsf,fd->bsd", h, w_down)

    x = A_x
    x = x + _A_ref(_layernorm(x, axis=-1), A_wqkv, A_wo)
    x = x + _B_ref(_layernorm(x, axis=-1), B_w_gate, B_w_up, B_w_down)
    x = x + _A_ref(_layernorm(x, axis=-1), A_wqkv, A_wo)
    x = x + _B_ref(_layernorm(x, axis=-1), B_w_gate, B_w_up, B_w_down)
    return x
```

```python
HDR = open('interleave_layers__sliding_block__glu_gated_geglu__prompt.s.ref').read().split('\n')
TOP = '\n'.join([l for l in HDR if l.startswith(';') and '@launch' not in l and 'Override' not in l and 'grid=ceil' not in l][:11]) + '\n'

def make_file(launches, kernels):
    s = TOP
    for (n, g, b, l) in launches:
        s += f'; @launch kernel={n} grid=({g},1,1) block=({b},1,1) lds={l}\n'
    s += '.amdgcn_target "amdgcn-amd-amdhsa--gfx950"\n.text\n'
    for n, (body, vg, sg, acc) in kernels.items():
        s += f'.globl {n}\n.p2align 8\n.type {n},@function\n{n}:\n{body}\n  s_endpgm\n'
    s += '.section .rodata,"a"\n'
    for n, (body, vg, sg, acc) in kernels.items():
        s += f'''.p2align 6
.amdhsa_kernel {n}
  .amdhsa_next_free_vgpr {vg}
  .amdhsa_next_free_sgpr {sg}
  .amdhsa_accum_offset {acc}
  .amdhsa_group_segment_fixed_size 0
  .amdhsa_kernarg_size 80
  .amdhsa_user_sgpr_count 2
  .amdhsa_user_sgpr_kernarg_segment_ptr 1
  .amdhsa_system_sgpr_workgroup_id_x 1
  .amdhsa_float_denorm_mode_32 3
  .amdhsa_float_denorm_mode_16_64 3
.end_amdhsa_kernel
'''
    return s
```

```python
import sys
sys.path.insert(0, 'dev')
from kasm import K
from layout import *

NJ_QKV = 300; NJ_GU = 540; NJ_WO = 100; NJ_WD = 270; NJ_X = 256; NJ_PAD = 64
J_GU = NJ_QKV; J_WO = J_GU + NJ_GU; J_WD = J_WO + NJ_WO; J_X = J_WD + NJ_WD; J_PAD = J_X + NJ_X; J_FLAG = J_PAD + NJ_PAD
NJOBS = J_FLAG + 1
K0_GRID = (NJOBS + 3) // 4

def magic(d, maxx):
    for sh in range(8, 24):
        m = (1 << sh) // d + 1
        if all((x * m) >> sh == x // d for x in range(maxx + 1)) and m * maxx < (1 << 31) and m < (1 << 24):
            return m, sh
    raise ValueError

def sdiv(k, dst, src, d, maxx):
    m, sh = magic(d, maxx)
    k(f's_mul_i32 {dst}, {src}, {m}')
    k(f's_lshr_b32 {dst}, {dst}, {sh}')

def vdiv(k, dst, src, d, maxx):
    m, sh = magic(d, maxx)
    k(f'v_mul_u32_u24 {dst}, {m}, {src}')
    k(f'v_lshrrev_b32 {dst}, {sh}, {dst}')

def gen_k0():
    k = K()
    k('s_load_dwordx16 s[4:19], s[0:1], 0')
    k('s_load_dwordx2 s[24:25], s[0:1], 72')
    k('v_lshrrev_b32 v1, 6, v0')
    k('v_and_b32 v0, 63, v0')
    k('v_readfirstlane_b32 s3, v1')
    k('s_lshl_b32 s2, s2, 2')
    k('s_add_u32 s2, s2, s3')
    k('v_and_b32 v2, 7, v0')
    k('v_lshrrev_b32 v3, 3, v0')
    k.wait_all()
    k('s_mov_b32 s28, s24'); k('s_mov_b32 s29, s25'); k(f's_mov_b32 s30, {WS_USED}'); k('s_mov_b32 s31, 0x20000')
    k('s_mov_b32 s23, 0x20000')
    k('s_mov_b32 s20, s6'); k('s_mov_b32 s21, s7'); k(f's_mov_b32 s22, {640*1920*2}')
    L_gu, L_wo, L_wd, L_x, L_pad, L_flag, L_end, L_pack, L_wodest, L_p32 = [k.newlabel('K0') for _ in range(10)]
    k(f's_cmp_ge_u32 s2, {NJOBS}'); k(f's_cbranch_scc1 {L_end}')
    k(f's_cmp_ge_u32 s2, {J_FLAG}'); k(f's_cbranch_scc1 {L_flag}')
    k(f's_cmp_ge_u32 s2, {J_PAD}'); k(f's_cbranch_scc1 {L_pad}')
    k(f's_cmp_ge_u32 s2, {J_X}'); k(f's_cbranch_scc1 {L_x}')
    k(f's_cmp_ge_u32 s2, {J_WD}'); k(f's_cbranch_scc1 {L_wd}')
    k(f's_cmp_ge_u32 s2, {J_WO}'); k(f's_cbranch_scc1 {L_wo}')
    k(f's_cmp_ge_u32 s2, {J_GU}'); k(f's_cbranch_scc1 {L_gu}')

    def src_plain():
        k('s_lshl_b32 s36, s33, 3')
        k('v_add_u32 v42, s36, v3')
        k('s_lshl_b32 s37, s32, 3')
        k('v_mul_lo_u32 v4, v42, s37')
        k('s_lshl_b32 s36, s34, 7')
        k('v_lshl_add_u32 v4, v2, 4, v4')
        k('v_add_u32 v4, s36, v4')
        k('s_lshl_b32 s36, s32, 2')
        k('v_add_u32 v5, s36, v4')

    sdiv(k, 's33', 's2', 30, 300)
    k('s_mul_i32 s36, s33, 30'); k('s_sub_u32 s34, s2, s36')
    k('s_mov_b32 s32, 3840')
    src_plain()
    for e, dst in ((0, 'v40'), (1, 'v41')):
        k('s_lshl_b32 s36, s34, 4')
        k('v_lshl_add_u32 v43, v2, 1, s36')
        if e: k('v_add_u32 v43, 1, v43')
        vdiv(k, 'v44', 'v43', 160, 480)
        k('v_mul_u32_u24 v45, 160, v44'); k('v_sub_u32 v45, v43, v45')
        vdiv(k, 'v46', 'v45', 5, 160)
        k('v_mul_u32_u24 v47, 5, v46'); k('v_sub_u32 v47, v45, v47')
        k('v_and_b32 v48, 1, v47'); k('v_lshlrev_b32 v48, 1, v48'); k('v_lshrrev_b32 v49, 1, v47'); k('v_or_b32 v48, v48, v49')
        k('v_cmp_gt_u32 vcc, 2, v44')
        k('v_cndmask_b32 v48, v47, v48, vcc')
        k('v_lshlrev_b32 v48, 2, v48'); k('v_lshl_add_u32 v48, v46, 4, v48')
        k('v_lshlrev_b32 v49, 2, v46'); k('v_add_u32 v49, 512, v49')
        k('v_cmp_eq_u32 vcc, 4, v47')
        k('v_cndmask_b32 v48, v48, v49, vcc')
        k('v_mul_u32_u24 v49, 640, v44')
        k(f'v_add_u32 {dst}, v48, v49')
    k.settle(); k(f's_branch {L_p32}')

    k.label(L_gu)
    k(f's_sub_u32 s38, s2, {J_GU}')
    k('s_cmp_ge_u32 s38, 270')
    k('s_cselect_b32 s20, s14, s12'); k('s_cselect_b32 s21, s15, s13')
    k('s_cselect_b32 s39, 16, 0')
    k('s_cselect_b32 s36, 270, 0'); k('s_sub_u32 s38, s38, s36')
    k(f's_mov_b32 s22, {640*1728*2}')
    sdiv(k, 's33', 's38', 27, 270)
    k('s_mul_i32 s36, s33, 27'); k('s_sub_u32 s34, s38, s36')
    k('s_mov_b32 s32, 3456')
    src_plain()
    k('s_lshl_b32 s36, s34, 2'); k('s_add_u32 s36, s36, 60'); k('s_lshl_b32 s36, s36, 5'); k('s_add_u32 s36, s36, s39')
    k('v_lshrrev_b32 v43, 1, v2'); k('v_lshl_add_u32 v43, v43, 5, s36')
    k('v_and_b32 v44, 1, v2'); k('v_lshl_add_u32 v40, v44, 2, v43')
    k('v_add_u32 v41, 8, v40')
    k.label(L_p32)
    k('s_mov_b32 s36, 40960')
    for pr, dst in (('v40', 'v6'), ('v41', 'v7')):
        k(f'v_lshrrev_b32 v43, 5, {pr}'); k('v_mul_lo_u32 v43, v43, s36')
        k(f'v_and_b32 v44, 31, {pr}'); k('v_lshl_add_u32 v43, v44, 4, v43')
        k('v_lshl_add_u32 v43, v42, 9, v43')
        k(f'v_add_u32 {dst}, {WP32}, v43')
    k('s_mov_b32 s35, 1')
    k.settle(); k(f's_branch {L_pack}')

    k.label(L_wo)
    k(f's_sub_u32 s38, s2, {J_WO}')
    k('s_mov_b32 s20, s8'); k('s_mov_b32 s21, s9'); k(f's_mov_b32 s22, {640*640*2}')
    sdiv(k, 's33', 's38', 10, 100)
    k('s_mul_i32 s36, s33, 10'); k('s_sub_u32 s34, s38, s36')
    k('s_mov_b32 s32, 1280')
    k('s_lshl_b32 s36, s33, 3')
    k('v_add_u32 v42, s36, v3')
    k('v_lshrrev_b32 v43, 1, v42'); k('v_mul_u32_u24 v43, 20, v43'); k('v_and_b32 v44, 1, v42'); k('v_lshl_add_u32 v43, v44, 3, v43')
    k('v_mul_u32_u24 v44, 40, v42'); k(f'v_subrev_u32 v44, {64*40-16}, v44')
    k('v_cmp_gt_u32 vcc, 64, v42')
    k('v_cndmask_b32 v43, v44, v43, vcc')
    k('v_mov_b32 v45, 20'); k('v_cndmask_b32 v45, v45, 4, vcc')
    k('v_add_u32 v45, v45, v43')
    k('s_lshl_b32 s36, s34, 7')
    k('v_lshl_add_u32 v46, v2, 4, s36')
    k('v_mad_u32_u24 v4, v43, s32, v46'); k('v_mad_u32_u24 v5, v45, s32, v46')
    k(f's_mov_b32 s39, {20*5*1024}'); k(f's_mov_b32 s40, {WOP}')
    k.settle(); k(f's_branch {L_wodest}')

    k.label(L_wd)
    k(f's_sub_u32 s38, s2, {J_WD}')
    k('s_mov_b32 s20, s16'); k('s_mov_b32 s21, s17'); k(f's_mov_b32 s22, {1728*640*2}')
    sdiv(k, 's33', 's38', 10, 270)
    k('s_mul_i32 s36, s33, 10'); k('s_sub_u32 s34, s38, s36')
    k('s_mov_b32 s32, 1280')
    src_plain()
    k(f's_mov_b32 s39, {54*5*1024}'); k(f's_mov_b32 s40, {WDP}')
    k.label(L_wodest)
    k('v_lshrrev_b32 v50, 2, v42'); k('v_mul_u32_u24 v50, 5120, v50'); k('v_and_b32 v51, 3, v42'); k('v_lshl_add_u32 v50, v51, 8, v50')
    k('v_add_u32 v50, s40, v50')
    for e, dst in ((0, 'v6'), (1, 'v7')):
        k('s_lshl_b32 s36, s34, 4')
        k('v_lshl_add_u32 v43, v2, 1, s36')
        if e: k('v_add_u32 v43, 1, v43')
        vdiv(k, 'v44', 'v43', 20, 160)
        k('v_mul_u32_u24 v45, 20, v44'); k('v_sub_u32 v45, v43, v45')
        k('v_lshrrev_b32 v46, 3, v45'); k('v_lshlrev_b32 v46, 11, v46'); k('v_and_b32 v47, 1, v45'); k('v_lshl_add_u32 v46, v47, 10, v46')
        k('v_bfe_u32 v47, v45, 1, 2'); k('v_lshl_add_u32 v46, v47, 6, v46')
        k('v_lshlrev_b32 v47, 6, v45'); k(f'v_add_u32 v47, {4096-1024}, v47')
        k('v_cmp_gt_u32 vcc, 16, v45')
        k('v_cndmask_b32 v46, v47, v46, vcc')
        k('v_mul_lo_u32 v44, v44, s39')
        k(f'v_add3_u32 {dst}, v44, v46, v50')
    k('s_mov_b32 s35, 0')

    k.settle()
    k.label(L_pack)
    k('s_mov_b32 s41, 0'); k('s_mov_b32 s42, s32'); k('s_lshl_b32 s43, s32, 1'); k('s_add_u32 s44, s43, s32')
    for j in range(8):
        k(f'buffer_load_dwordx4 v[{8+4*j}:{11+4*j}], v{4+(j>>2)}, s[20:23], s{41+(j&3)} offen')
    k('s_mov_b32 s45, 0x05040100'); k('s_mov_b32 s46, 0x07060302'); k('s_mov_b32 s47, 0x3f803f80')
    for c in range(8):
        d = 52 + 4 * c
        for jp in range(4):
            k(f'v_perm_b32 v{d+jp}, v{8+4*(2*jp+1)+(c>>1)}, v{8+4*(2*jp)+(c>>1)}, s{45+(c&1)}')
        k(f'buffer_store_dwordx4 v[{d}:{d+3}], v{6+(c>>2)}, s[28:31], 0 offen offset:{(c&3)*16}')
    k('s_cmp_eq_u32 s35, 0'); k.settle(); k(f's_cbranch_scc1 {L_end}')
    for c in range(8):
        d = 52 + 4 * c
        k(f'v_mov_b32 v{8+c}, 0')
    for jp in range(4):
        for c in range(8):
            d = 52 + 4 * c
            k(f'v_dot2_f32_bf16 v{8+c}, v{d+jp}, s47, v{8+c}')
    k.nop(3)
    for c in range(4):
        k(f'v_permlane32_swap_b32 v{8+c}, v{12+c}')
    for c in range(4):
        k(f'v_add_f32 v{8+c}, v{8+c}, v{12+c}')
    for c in range(2):
        k(f'v_permlane16_swap_b32 v{8+c}, v{10+c}')
    for c in range(2):
        k(f'v_add_f32 v{8+c}, v{8+c}, v{10+c}')
    for c in range(2):
        k(f'v_add_f32_dpp v{10+c}, v{8+c}, v{8+c} row_ror:8 row_mask:0xf bank_mask:0xf')
    k('v_and_b32 v12, 1, v3'); k('v_cmp_eq_u32 vcc, 1, v12')
    k('v_cndmask_b32 v10, v10, v11, vcc')
    k('v_cmp_gt_u32 vcc, 4, v3')
    k('v_cndmask_b32 v13, v41, v40, vcc')
    k('v_and_b32 v14, 3, v3'); k('v_add_lshl_u32 v13, v13, v14, 2')
    k(f's_mul_i32 s36, s33, {168*128}'); k(f's_add_u32 s36, s36, {CSP}')
    k('buffer_store_dword v10, v13, s[28:31], s36 offen')
    k.settle(); k(f's_branch {L_end}')

    k.vmq = []; k.lgq = []
    k.label(L_x)
    k(f's_sub_u32 s38, s2, {J_X}')
    k('s_mov_b32 s20, s4'); k('s_mov_b32 s21, s5'); k(f's_mov_b32 s22, {2048*640*2}')
    k('s_lshr_b32 s33, s38, 2')
    k('s_and_b32 s34, s38, 3')
    k('v_and_b32 v2, 31, v0'); k('v_lshrrev_b32 v3, 5, v0')
    k('s_lshl_b32 s36, s34, 1'); k('v_add_u32 v3, s36, v3')
    k('s_lshl_b32 s36, s33, 5'); k('v_add_u32 v6, s36, v2')
    k('v_mul_u32_u24 v4, 1280, v6'); k('v_mul_u32_u24 v5, 160, v3'); k('v_add_u32 v4, v4, v5')
    for e in range(10):
        k(f'buffer_load_dwordx4 v[{8+4*e}:{11+4*e}], v4, s[20:23], 0 offen offset:{16*e}')
    k('v_mul_u32_u24 v5, 5120, v3'); k('v_lshl_add_u32 v5, v2, 4, v5')
    k(f's_mul_i32 s36, s33, {80*512}'); k(f's_add_u32 s36, s36, {LBASE+XIN}'); k('s_add_u32 s37, s36, 2560')
    k('s_mov_b32 s47, 0x3f803f80')
    k('v_mov_b32 v50, 0'); k('v_mov_b32 v51, 0'); k('v_mov_b32 v52, 0'); k('v_mov_b32 v53, 0')
    for e in range(10):
        k(f'buffer_store_dwordx4 v[{8+4*e}:{11+4*e}], v5, s[28:31], s{36+(e>=5)} offen offset:{512*(e%5)}')
        for r in range(4):
            k(f'v_dot2_f32_bf16 v{50+(r&1)*2}, v{8+4*e+r}, s47, v{50+(r&1)*2}')
            k(f'v_dot2_f32_bf16 v{51+(r&1)*2}, v{8+4*e+r}, v{8+4*e+r}, v{51+(r&1)*2}')
    k.nop(3)
    k('v_add_f32 v50, v50, v52'); k('v_add_f32 v51, v51, v53')
    k('v_lshlrev_b32 v7, 14, v3'); k('v_lshl_add_u32 v7, v6, 3, v7')
    k(f's_mov_b32 s36, {LBASE+SIN}')
    k('buffer_store_dwordx2 v[50:51], v7, s[28:31], s36 offen')
    k.settle(); k(f's_branch {L_end}')

    k.vmq = []; k.lgq = []
    k.label(L_pad)
    k(f's_sub_u32 s38, s2, {J_PAD}')
    k('s_lshr_b32 s33, s38, 5'); k('s_and_b32 s34, s38, 31')
    k(f's_mul_i32 s33, s33, {LSTRIDE}'); k(f's_add_u32 s33, s33, {LBASE}')
    k(f's_mul_i32 s36, s34, {HSK}'); k('s_add_u32 s36, s36, s33'); k(f's_add_u32 s36, s36, {KP}')
    k(f's_mul_i32 s37, s34, {HSV}'); k('s_add_u32 s37, s37, s33'); k(f's_add_u32 s37, s37, {VP}')
    k('v_mov_b32 v8, 0'); k('v_mov_b32 v9, 0'); k('v_mov_b32 v10, 0'); k('v_mov_b32 v11, 0')
    k('v_lshlrev_b32 v4, 4, v0')
    k('buffer_store_dwordx4 v[8:11], v4, s[28:31], s37 offen')
    k('v_lshlrev_b32 v5, 3, v0')
    k('buffer_store_dwordx2 v[8:9], v5, s[28:31], s37 offen offset:1024')
    k('v_mov_b32 v12, 0'); k('v_mov_b32 v13, 0'); k('v_mov_b32 v15, 0')
    k('v_mov_b32 v16, 0xf14a')
    k('v_cmp_le_u32 vcc, 32, v0')
    k('v_cndmask_b32 v14, 0, v16, vcc')
    k(f'v_mov_b32 v17, {OOB}')
    k('v_cmp_gt_u32 vcc, 48, v0')
    k('v_cndmask_b32 v4, v17, v4, vcc')
    k('buffer_store_dwordx4 v[12:15], v4, s[28:31], s36 offen')
    k.settle(); k(f's_branch {L_end}')

    k.vmq = []; k.lgq = []
    k.label(L_flag)
    k('v_lshlrev_b32 v4, 4, v0')
    for r in range(4): k(f'v_mov_b32 v{8+r}, 0x01010101'); k(f'v_mov_b32 v{12+r}, 0')
    k(f'buffer_store_dwordx4 v[8:11], v4, s[28:31], 0 offen')
    for sl in range(1, 11):
        k(f's_mov_b32 s36, {FLAGS + sl*FLAG_SLOT}')
        k(f'buffer_store_dwordx4 v[12:15], v4, s[28:31], s36 offen')
    k.label(L_end)
    return k.text(), 88, 56

if __name__ == '__main__':
    print(gen_k0()[0])
```

```python
import sys, math, struct
sys.path.insert(0, 'dev')
from kasm import K
from layout import *

def f32(x): return '0x%08x' % struct.unpack('<I', struct.pack('<f', x))[0]

SC = 'sc1'
POLL_LIMIT = 40000
LDS_BYTES = 163840

class Opt:
    ts = False

def interleave(a, b):
    out = []; ia = ib = 0
    na, nb = len(a), len(b)
    while ia < na or ib < nb:
        if ib >= nb or (ia < na and ia * nb <= ib * na):
            out.append(a[ia]); ia += 1
        else:
            out.append(b[ib]); ib += 1
    return out

class Soff:
    def __init__(self, k, base, tmp):
        self.k = k; self.base = base; self.tmp = tmp; self.cur = None
    def get(self, c):
        hi = c & ~4095; lo = c & 4095
        if hi == 0: return self.base, lo
        if self.cur != hi:
            self.k(f's_add_u32 {self.tmp}, {self.base}, {hi}')
            self.cur = hi
        return self.tmp, lo

def off(imm): return f' offset:{imm}' if imm else ''

def gen_main(opt=Opt):
    k = K()
    L_end = 'MAIN_END'
    tsn = [0]
    def stamp():
        if not opt.ts: return
        lab = k.newlabel('TS')
        k.settle()
        k('s_cmp_lg_u32 s18, 0'); k(f's_cbranch_scc1 {lab}')
        snap = k.snapshot()
        k.wait_all(vm=False, lg=True)
        k('s_memrealtime s[60:61]')
        k.wait_all(vm=False, lg=True)
        k('v_mov_b32 v14, s60')
        k('s_lshl_b32 s62, s2, 8'); k('s_lshl_b32 s63, s20, 7'); k('s_add_u32 s62, s62, s63'); k(f's_add_u32 s62, s62, {TS + tsn[0]*4}')
        k('v_mov_b32 v15, 0')
        k.raw('  buffer_store_dword v14, v15, s[4:7], s62 offen'); k.t += 1
        k.raw('  s_waitcnt vmcnt(0)')
        k.label(lab)
        k.restore(snap)
        tsn[0] += 1

    k('s_cmp_ge_u32 s2, 256'); k(f's_cbranch_scc1 {L_end}')
    k('s_load_dwordx2 s[14:15], s[0:1], 56')
    k('s_load_dwordx2 s[12:13], s[0:1], 72')
    k('v_lshrrev_b32 v1, 6, v0')
    k('v_and_b32 v0, 63, v0')
    k('v_readfirstlane_b32 s18, v1')
    k('s_and_b32 s16, s2, 7'); k('s_lshr_b32 s17, s2, 3')
    k('v_lshlrev_b32 v1, 4, v0'); k('v_add_u32 v2, 0x10000, v1'); k('v_add_u32 v3, 0x20000, v1')
    k('v_and_b32 v4, 31, v0'); k('v_lshrrev_b32 v5, 5, v0')
    k('v_and_b32 v6, 15, v0'); k('v_lshrrev_b32 v7, 4, v0')
    k(f'v_mov_b32 v8, {OOB}')
    k.wait_all()
    k('s_mov_b32 s4, s12'); k('s_mov_b32 s5, s13'); k(f's_mov_b32 s6, {WS_USED}'); k('s_mov_b32 s7, 0x20000')
    k('s_mov_b32 s8, s12'); k('s_mov_b32 s9, s13'); k(f's_mov_b32 s10, {WS_USED}'); k('s_mov_b32 s11, 0x20000')
    k('s_mov_b32 s20, 0'); k(f's_mov_b32 s19, {LBASE}')
    k('s_lshl_b32 s21, s16, 7')
    k.settle()
    k.label('LAYER_LOOP')
    stamp()

    def ldsaddr(a):
        return f'v{1 + (a >> 16)}', a & 0xffff

    def poll(offs_sgprs, nd):
        lab = k.newlabel('POLL'); done = k.newlabel('POLLD')
        k.wait_all(vm=False, lg=True)
        k.settle()
        k('s_cmp_lg_u32 s18, 0'); k(f's_cbranch_scc1 {done}')
        k('s_mov_b32 s59, 0')
        k.label(lab)
        for i, o in enumerate(offs_sgprs):
            k(f's_load_dwordx{nd} s[{64+8*i}:{64+8*i+nd-1}], s[12:13], {o} glc')
        k.wait_all(vm=False, lg=True)
        n = len(offs_sgprs)
        regs = []
        for i in range(n): regs += [64 + 8 * i + 2 * j for j in range(nd // 2)]
        for r in regs[1:]:
            k(f's_and_b64 s[64:65], s[64:65], s[{r}:{r+1}]')
        k('s_and_b32 s64, s64, s65')
        k('s_cmp_eq_u32 s64, 0x01010101'); k(f's_cbranch_scc1 {done}')
        k('s_add_u32 s59, s59, 1'); k(f's_cmp_lt_u32 s59, {POLL_LIMIT}'); k(f's_cbranch_scc1 {lab}')
        k.label(done)
        k('s_barrier')

    def publish(phase):
        lab = k.newlabel('PUB')
        k.wait_all(force=True)
        k('s_barrier')
        k.settle()
        k('s_cmp_lg_u32 s18, 0'); k(f's_cbranch_scc1 {lab}')
        k(f's_add_u32 s58, s21, {FLAGS + (phase + 1) * FLAG_SLOT}'); k('s_add_u32 s58, s58, s17')
        k('v_mov_b32 v14, 1'); k('v_mov_b32 v15, 0')
        k('s_mov_b64 exec, 1')
        k.raw(f'  buffer_store_byte v14, v15, s[4:7], s58 offen {SC}'); k.t += 1
        k('s_mov_b64 exec, -1')
        k.label(lab)

    ACC = 128; AUGW = 112; AUGX = 126; WB = 160
    def gemm32_pre(NT, NS):
        k(f'v_mul_u32_u24 v9, {5*168*128}, v5'); k('v_lshl_add_u32 v9, v4, 2, v9')
        for p in range(5):
            if p: k(f's_add_u32 s26, s25, {p*168*128}')
            for t in range(NT):
                k(f'buffer_load_dword v{16+5*t+p}, v9, s[4:7], {"s26" if p else "s25"} offen{off(t*128)}')
        k('s_lshl_b32 s27, s18, 10'); k('s_add_u32 s27, s27, s24')
        k(f's_mul_i32 s28, s18, {NT*1024}')
        for c in range(NS): dma_chunk(NT, NS, c)
        for t in range(NT):
            b = 16 + 5 * t
            k(f'v_add_f32 v{b}, v{b}, v{b+1}'); k(f'v_add_f32 v{b+2}, v{b+2}, v{b+3}')
            k(f'v_add_f32 v{b}, v{b}, v{b+4}'); k(f'v_mov_b32 v{b+1}, 0'); k(f'v_add_f32 v{b}, v{b}, v{b+2}')
        for t in range(NT):
            b = 16 + 5 * t
            k(f'v_permlane32_swap_b32 v{b}, v{b+1}')
        for t in range(NT):
            b = 16 + 5 * t
            k(f'v_add_f32 v{b}, v{b}, v{b+1}')
            k(f'v_cvt_pk_bf16_f32 v{b+2}, v{b}, v{b}')
            k(f'v_and_b32 v{b+3}, 0xffff0000, v{b+2}')
            k(f'v_sub_f32 v{b+3}, v{b}, v{b+3}')
            k(f'v_cvt_pk_bf16_f32 v{AUGW+2*t}, v{b}, v{b+3}')
            k(f'v_and_b32 v{AUGW+2*t+1}, 0xffff, v{b+2}')

    def dma_chunk(NT, NS, c):
        slot = c % NS
        for t in range(NT):
            k(f's_add_u32 s29, s27, {t*40960 + c*4096}')
            k(f's_add_u32 m0, s28, {slot*4*NT*1024 + t*1024}')
            k(f'buffer_load_dwordx4 v1, s[4:7], s29 offen lds', tag=('W', c))

    def gemm32_post(NT):
        k('v_lshlrev_b32 v9, 16, v5'); k('v_lshl_add_u32 v9, v4, 3, v9')
        for p in range(4):
            if p: k(f's_add_u32 s26, s31, {p*16384}')
            k(f'buffer_load_dwordx2 v[{56+2*p}:{57+2*p}], v9, s[4:7], {"s26" if p else "s31"} offen {SC}')
        so = Soff(k, 's30', 's26')
        for s in range(40):
            sg, imm = so.get(s * 1024)
            k(f'buffer_load_dwordx4 a[{4*s}:{4*s+3}], v1, s[4:7], {sg} offen{off(imm)} {SC}')
        k('v_pk_add_f32 v[56:57], v[56:57], v[58:59]'); k('v_pk_add_f32 v[60:61], v[60:61], v[62:63]')
        k('v_pk_add_f32 v[56:57], v[56:57], v[60:61]')
        k('v_mov_b32 v58, v56'); k('v_mov_b32 v59, v57')
        k('v_permlane32_swap_b32 v56, v58'); k('v_permlane32_swap_b32 v57, v59')
        k('v_pk_add_f32 v[56:57], v[56:57], v[58:59]')
        k(f'v_mul_f32 v56, {f32(-1.0/640)}, v56')
        k(f'v_mul_f32 v57, {f32(1.0/640)}, v57')
        k('v_fma_f32 v57, -v56, v56, v57')
        k('v_max_f32 v57, 0, v57')
        k(f'v_add_f32 v57, {f32(1e-5)}, v57')
        k('v_rsq_f32 v64, v57')
        k(f'v_cvt_pk_bf16_f32 v{AUGX}, v56, v56')
        k(f'v_and_b32 v58, 0xffff0000, v{AUGX}')
        k('v_sub_f32 v58, v56, v58')
        k(f'v_cvt_pk_bf16_f32 v{AUGX+1}, v58, 0')

    def gemm32_loop(NT, NS, swap):
        def wreg(s, t): b = WB + ((s & 1) * NT + t) * 4; return f'a[{b}:{b+3}]'
        def rd(s, t):
            c = s >> 2; kk = s & 3
            a, o = ldsaddr((c % NS) * 4 * NT * 1024 + (kk * NT + t) * 1024)
            return f'ds_read_b128 {wreg(s,t)}, {a}{off(o)}'
        def mf(s, t):
            acc = f'v[{ACC+16*t}:{ACC+16*t+15}]'
            x = f'a[{4*s}:{4*s+3}]'
            A, B = (x, wreg(s, t)) if swap else (wreg(s, t), x)
            return f'v_mfma_f32_32x32x16_bf16 {acc}, {A}, {B}, {acc if s else 0}'
        def chunk_sync(c):
            k.wait_vm(('W', c))
            k.wait_all(vm=False, lg=True)
            k('s_barrier')
            if c >= 1 and c - 1 + NS < 10: dma_chunk(NT, NS, c - 1 + NS)
        chunk_sync(0)
        for t in range(NT): k(rd(0, t))
        for s in range(40):
            if s + 1 < 40 and (s + 1) % 4 == 0:
                k(mf(s, 0))
                chunk_sync((s + 1) >> 2)
                for t in range(NT):
                    k(rd(s + 1, t))
                    if t + 1 < NT: k(mf(s, t + 1))
            else:
                for t in range(NT):
                    if s + 1 < 40: k(rd(s + 1, t))
                    k(mf(s, t))
        for t in range(NT):
            acc = f'v[{ACC+16*t}:{ACC+16*t+15}]'
            w = f'v[{AUGW+2*t}:{AUGW+2*t+1}]'; x = f'v[{AUGX}:{AUGX+1}]'
            A, B = (x, w) if swap else (w, x)
            k(f'v_mfma_f32_32x32x8_bf16 {acc}, {A}, {B}, {acc}')

    L_qkv_done = k.newlabel('QKVD'); L_v = k.newlabel('QKV_V'); L_single = k.newlabel('QKV_S'); L_pubq = k.newlabel('QKV_P')
    k('s_cmp_ge_u32 s17, 30'); k(f's_cbranch_scc1 {L_pubq}')
    k('s_cmp_ge_u32 s17, 15'); k('s_cselect_b32 s32, 1, 0'); k('s_cselect_b32 s33, 15, 0'); k('s_sub_u32 s33, s17, s33')
    k(f's_mul_i32 s24, s33, {4*40960}'); k(f's_add_u32 s24, s24, {WP32}')
    k(f's_lshl_b32 s25, s33, 9'); k(f's_add_u32 s25, s25, {CSP}')
    gemm32_pre(4, 8)
    k('s_lshl_b32 s34, s16, 3'); k('s_lshl_b32 s35, s32, 2'); k('s_add_u32 s34, s34, s35'); k('s_add_u32 s34, s34, s18')
    k(f's_mul_i32 s30, s34, {80*512}'); k('s_add_u32 s30, s30, s19')
    k('s_lshl_b32 s31, s34, 8'); k('s_add_u32 s31, s31, s19'); k(f's_add_u32 s31, s31, {SIN}')
    k('s_lshl_b32 s35, s32, 4'); k('s_add_u32 s35, s35, s21'); k(f's_add_u32 s35, s35, {FLAGS + 0*FLAG_SLOT}')
    poll(['s35'], 4)
    stamp()
    gemm32_post(4)
    k.settle()
    k('s_cmp_ge_u32 s33, 10'); k(f's_cbranch_scc1 {L_v}')
    snap = k.snapshot()
    gemm32_loop(4, 8, False)
    k('s_cmp_ge_u32 s33, 5')
    k(f's_cselect_b32 s36, {f32(1.0)}, {f32(DH**-0.5*math.log2(math.e))}')
    k(f's_mov_b32 s37, {HSQ}'); k(f's_cselect_b32 s37, {HSK}, s37')
    k(f's_mov_b32 s38, {QP}'); k(f's_cselect_b32 s38, {KP+768}, s38')
    k('s_cselect_b32 s39, 5, 0'); k('s_cselect_b32 s41, 0, 0x3f80'); k('s_sub_u32 s39, s33, s39')
    k('s_add_u32 s38, s38, s19')
    k(f's_mul_i32 s40, s34, {2*768}'); k('s_add_u32 s38, s38, s40')
    k('v_mul_f32 v64, s36, v64'); k('v_mov_b32 v65, v64')
    k('v_lshrrev_b32 v9, 4, v4'); k('v_mul_u32_u24 v9, 768, v9'); k('v_lshl_add_u32 v9, v6, 4, v9')
    for t in range(4):
        for r in range(0, 16, 2):
            a = ACC + 16 * t + r
            k(f'v_pk_mul_f32 v[{a}:{a+1}], v[{a}:{a+1}], v[64:65]')
    k.settle()
    k('s_cmp_eq_u32 s39, 4'); k(f's_cbranch_scc1 {L_single}')
    snap2 = k.snapshot()
    k('v_lshl_add_u32 v9, v5, 8, v9')
    k('s_lshl_b32 s40, s39, 3'); k('s_mul_i32 s40, s40, s37'); k('s_add_u32 s38, s38, s40')
    for p in range(8):
        a = ACC + 8 * p; d = 16 + 4 * (p & 3)
        for j in range(4): k(f'v_cvt_pk_bf16_f32 v{d+j}, v{a+2*j}, v{a+2*j+1}')
        k(f'buffer_store_dwordx4 v[{d}:{d+3}], v9, s[4:7], s38 offen {SC}')
        if p < 7: k('s_add_u32 s38, s38, s37')
    k.settle(); k(f's_branch {L_pubq}')
    k.label(L_single); k.restore(snap2)
    k('v_mul_lo_u32 v10, v5, s37'); k('v_add3_u32 v9, v9, v10, 0x200' if False else 'v_add_u32 v9, v9, v10')
    k('s_add_u32 s38, s38, 512'); k('s_lshl_b32 s37, s37, 1')
    for q in range(4): k(f'v_mov_b32 v{16+4*q+2}, s41'); k(f'v_mov_b32 v{16+4*q+3}, 0')
    for q in range(16):
        a = ACC + 4 * q; d = 16 + 4 * (q & 3)
        for j in range(2): k(f'v_cvt_pk_bf16_f32 v{d+j}, v{a+2*j}, v{a+2*j+1}')
        k(f'buffer_store_dwordx4 v[{d}:{d+3}], v9, s[4:7], s38 offen {SC}')
        if q < 15: k('s_add_u32 s38, s38, s37')
    k.settle(); k(f's_branch {L_pubq}')
    k.label(L_v); k.restore(snap)
    MISC = 147456
    k(f's_lshl_b32 s36, s18, 8'); k(f's_add_u32 s36, s36, {MISC}')
    k('v_lshl_add_u32 v9, v0, 2, s36')
    k('ds_write_b32 v9, v64')
    k('v_lshl_add_u32 v9, v5, 4, s36')
    k.wait_all(vm=False, lg=True)
    for u in range(4): k(f'ds_read_b128 v[{68+4*u}:{71+4*u}], v9{off(32*u)}')
    gemm32_loop(4, 8, True)
    k('s_sub_u32 s39, s33, 10')
    k(f's_mul_i32 s38, s34, 1536'); k('s_add_u32 s38, s38, s19'); k(f's_add_u32 s38, s38, {VP+1536}')
    k('s_mov_b32 s42, s38')
    k(f's_mov_b32 s37, {HSV}')
    k('v_lshrrev_b32 v9, 4, v4'); k('v_mul_lo_u32 v9, v9, s37'); k('v_lshl_add_u32 v9, v5, 8, v9'); k('v_lshl_add_u32 v9, v6, 4, v9')
    k('v_lshrrev_b32 v10, 2, v4'); k('v_mul_lo_u32 v10, v10, s37'); k('v_lshl_add_u32 v10, v5, 7, v10'); k('v_and_b32 v11, 3, v4'); k('v_lshl_add_u32 v10, v11, 4, v10'); k('v_add_u32 v10, 1024, v10')
    k('s_cmp_eq_u32 s39, 4')
    k('s_cselect_b64 vcc, -1, 0')
    k(f's_mov_b32 s40, {2*HSV}'); k(f's_cselect_b32 s40, {8*HSV}, s40')
    k('s_mov_b32 s41, 512'); k('s_cselect_b32 s41, 256, s41')
    k('s_cselect_b32 s43, 0, s39')
    k(f's_mul_i32 s43, s43, {8*HSV}'); k('s_add_u32 s38, s38, s43')
    k('v_cndmask_b32 v9, v9, v10, vcc')
    k('v_add_u32 v10, s41, v9')
    for t in range(4):
        for r in range(0, 16, 2):
            a = ACC + 16 * t + r
            k(f'v_pk_mul_f32 v[{a}:{a+1}], v[{a}:{a+1}], v[{68+r}:{69+r}]')
        for pc in range(2):
            d = 16 + 4 * ((2 * t + pc) & 3); a = ACC + 16 * t + 4 * pc
            k(f'v_cvt_pk_bf16_f32 v{d}, v{a}, v{a+1}'); k(f'v_cvt_pk_bf16_f32 v{d+1}, v{a+2}, v{a+3}')
            k(f'v_cvt_pk_bf16_f32 v{d+2}, v{a+8}, v{a+9}'); k(f'v_cvt_pk_bf16_f32 v{d+3}, v{a+10}, v{a+11}')
            k(f'buffer_store_dwordx4 v[{d}:{d+3}], v{9+pc}, s[4:7], s38 offen {SC}')
        if t < 3: k('s_add_u32 s38, s38, s40')
    k.settle()
    k('s_cmp_lg_u32 s39, 4'); k(f's_cbranch_scc1 {L_pubq}')
    for r in range(4): k(f'v_mov_b32 v{32+r}, 0x3f803f80')
    k('v_lshrrev_b32 v9, 2, v0'); k('v_mul_lo_u32 v9, v9, s37'); k('v_and_b32 v10, 3, v0'); k('v_lshl_add_u32 v9, v10, 7, v9')
    k(f'buffer_store_dwordx4 v[32:35], v9, s[4:7], s42 offen offset:{1024+64} {SC}')
    k(f's_add_u32 s42, s42, {16*HSV}')
    k(f'buffer_store_dwordx4 v[32:35], v9, s[4:7], s42 offen offset:{1024+64} {SC}')
    k.settle()
    k.label(L_pubq)
    publish(0)
    stamp()

    KF = 0; V0 = 80; V1 = 120; QF = 160
    SB = [64, 132]; PB = 200; OA = 236; MF = 244; MD = 248
    for r in range(4):
        k(f'v_lshl_add_u32 v9, v7, 2, {r}')
        k('v_cmp_gt_u32 vcc, v9, v6')
        k(f'v_mov_b32 v10, 0xf149f2ca')
        k(f'v_cndmask_b32 v{MF+r}, v10, 0, vcc')
        k(f'v_cndmask_b32 v{MD+r}, 0, v10, vcc')
    k('v_cmp_gt_u32 vcc, 48, v0'); k('v_cndmask_b32 v9, v8, v1, vcc')
    k('v_lshlrev_b32 v10, 7, v7'); k('v_lshl_add_u32 v11, v6, 4, v10')
    k('v_add_u32 v10, 64, v10')
    k('v_and_b32 v12, 7, v6'); k('v_cmp_eq_u32 vcc, 4, v12'); k('v_cndmask_b32 v10, v8, v10, vcc')
    k('v_cmp_gt_u32 vcc, 4, v6'); k('v_cndmask_b32 v10, v10, v11, vcc')
    k('s_lshl_b32 s24, s16, 4'); k('s_lshl_b32 s25, s18, 2'); k('s_add_u32 s24, s24, s25')
    k(f's_mul_i32 s25, s17, {HSQ}'); k('s_add_u32 s25, s25, s19'); k(f's_add_u32 s25, s25, {QP}')
    k('s_mul_i32 s26, s24, 768'); k('s_add_u32 s25, s25, s26')
    k(f's_mul_i32 s27, s17, {HSK}'); k('s_add_u32 s27, s27, s19'); k(f's_add_u32 s27, s27, {KP}')
    k(f's_sub_i32 s28, s26, {15*768}')
    k(f's_mul_i32 s29, s17, {HSV}'); k('s_add_u32 s29, s29, s19'); k(f's_add_u32 s29, s29, {VP}')
    k(f's_sub_i32 s30, s26, {7*1536}')
    k(f's_add_u32 s35, s21, {FLAGS + 1*FLAG_SLOT}')
    k('s_cmp_eq_u32 s16, 0'); k('s_cselect_b32 s36, 0, 128'); k('s_sub_u32 s36, s35, s36')
    poll(['s35', 's36'], 8)
    stamp()
    for a in range(4):
        k(f'buffer_load_dwordx4 a[{QF+4*a}:{QF+4*a+3}], v9, s[4:7], s25 offen{off(768*a)} {SC}')
    for n in range(20):
        k(f's_add_i32 s31, s28, {768*n}'); k('s_max_i32 s31, s31, 0'); k('s_add_u32 s31, s31, s27')
        k(f'buffer_load_dwordx4 a[{KF+4*n}:{KF+4*n+3}], v9, s[4:7], s31 offen {SC}')
    for b in range(10):
        k(f's_add_i32 s31, s30, {1536*b}'); k('s_max_i32 s31, s31, 0'); k('s_add_u32 s31, s31, s29')
        k(f'buffer_load_dwordx4 a[{V0+4*b}:{V0+4*b+3}], v1, s[4:7], s31 offen {SC}')
        k(f'buffer_load_dwordx4 a[{V1+4*b}:{V1+4*b+3}], v10, s[4:7], s31 offen offset:1024 {SC}')
    k('v_lshrrev_b32 v11, 1, v7'); k('v_lshlrev_b32 v11, 9, v11'); k('v_and_b32 v12, 1, v7'); k('v_lshl_add_u32 v11, v12, 3, v11'); k('v_lshl_add_u32 v11, v6, 4, v11')
    k('v_lshlrev_b32 v12, 4, v6'); k('v_cmp_gt_u32 vcc, 16, v0'); k('v_cndmask_b32 v12, v8, v12, vcc')
    k('s_lshr_b32 s32, s24, 1'); k(f's_mul_i32 s32, s32, {80*512}'); k('s_add_u32 s32, s32, s19'); k(f's_add_u32 s32, s32, {OB}')
    k('s_lshr_b32 s33, s17, 1'); k('s_lshl_b32 s33, s33, 9'); k('s_and_b32 s34, s17, 1'); k('s_lshl_b32 s34, s34, 3'); k('s_add_u32 s33, s33, s34')
    k(f's_add_u32 s33, s33, {64*512}'); k('s_add_u32 s33, s33, s32')
    k('s_lshl_b32 s34, s17, 10'); k('s_add_u32 s32, s32, s34')

    def qk(a):
        S = SB[a & 1]
        out = []
        for n in range(17):
            c = f'v[{MF}:{MF+3}]' if n == 0 else (f'v[{MD}:{MD+3}]' if n == 16 else '0')
            out.append(f'v_mfma_f32_16x16x32_bf16 v[{S+4*n}:{S+4*n+3}], a[{KF+4*(a+n)}:{KF+4*(a+n)+3}], a[{QF+4*a}:{QF+4*a+3}], {c}')
        return out
    def softmax(a):
        S = SB[a & 1]
        o = []
        o.append(f'v_max3_f32 v16, v{S}, v{S+1}, v{S+2}'); o.append(f'v_max3_f32 v17, v{S+3}, v{S+4}, v{S+5}')
        r = 6; c = 0
        while r < 68:
            o.append(f'v_max3_f32 v{16+c}, v{16+c}, v{S+r}, v{S+r+1}'); r += 2; c ^= 1
        o.append('v_max_f32 v16, v16, v17')
        o.append('v_mov_b32 v17, v16'); o.append('v_permlane16_swap_b32 v16, v17'); o.append('v_max_f32 v16, v16, v17')
        o.append('v_mov_b32 v17, v16'); o.append('v_permlane32_swap_b32 v16, v17'); o.append('v_max_f32 v16, v16, v17')
        o.append('v_mov_b32 v17, v16')
        b0 = a >> 1
        for n in range(17):
            s = S + 4 * n
            o.append(f'v_pk_add_f32 v[{s}:{s+1}], v[{s}:{s+1}], v[16:17] neg_lo:[0,1] neg_hi:[0,1]')
            o.append(f'v_pk_add_f32 v[{s+2}:{s+3}], v[{s+2}:{s+3}], v[16:17] neg_lo:[0,1] neg_hi:[0,1]')
            for j in range(4): o.append(f'v_exp_f32 v{s+j}, v{s+j}')
        return o
    def cvt(a):
        S = SB[a & 1]; o = []
        for n in range(17):
            s = S + 4 * n
            f = a + n; i = (f >> 1) - (a >> 1); e = f & 1
            p = PB + 4 * i + 2 * e
            o.append(f'v_cvt_pk_bf16_f32 v{p}, v{s}, v{s+1}'); o.append(f'v_cvt_pk_bf16_f32 v{p+1}, v{s+2}, v{s+3}')
        z = PB + 34 if (a & 1) == 0 else PB
        o.append(f'v_mov_b32 v{z}, 0'); o.append(f'v_mov_b32 v{z+1}, 0')
        return o
    def pv(a):
        o = []
        b0 = a >> 1
        for i in range(9):
            p = f'v[{PB+4*i}:{PB+4*i+3}]'
            o.append(f'v_mfma_f32_16x16x32_bf16 v[{OA}:{OA+3}], a[{V0+4*(b0+i)}:{V0+4*(b0+i)+3}], {p}, ' + (f'v[{OA}:{OA+3}]' if i else '0'))
            o.append(f'v_mfma_f32_16x16x32_bf16 v[{OA+4}:{OA+7}], a[{V1+4*(b0+i)}:{V1+4*(b0+i)+3}], {p}, ' + (f'v[{OA+4}:{OA+7}]' if i else '0'))
        return o
    def outo(a):
        o = []
        o.append(f'v_mov_b32 v20, v{OA+4}')
        o.append(f'v_permlane16_swap_b32 v{OA+4}, v20')
        o.append('v_rcp_f32 v20, v20'); o.append('v_mov_b32 v21, v20')
        for j in range(4): o.append(f'v_pk_mul_f32 v[{OA+2*j}:{OA+2*j+1}], v[{OA+2*j}:{OA+2*j+1}], v[20:21]')
        d = 24 + 4 * (a & 1)
        for j in range(4): o.append(f'v_cvt_pk_bf16_f32 v{d+j}, v{OA+2*j}, v{OA+2*j+1}')
        if a == 2:
            o.append(f's_add_u32 s32, s32, {80*512}'); o.append(f's_add_u32 s33, s33, {80*512}')
        o.append(f'buffer_store_dwordx2 v[{d}:{d+1}], v11, s[4:7], s32 offen{off(256*(a&1))} {SC}')
        o.append(f'buffer_store_dwordx2 v[{d+2}:{d+3}], v12, s[4:7], s33 offen{off(256*(a&1))} {SC}')
        return o
    for x in qk(0): k(x)
    for a in range(4):
        sm = softmax(a)
        nxt = qk(a + 1) if a < 3 else []
        for x in interleave(sm, nxt): k(x)
        for x in cvt(a): k(x)
        for x in pv(a): k(x)
        for x in outo(a): k(x)
    publish(1)
    stamp()

    A16 = 128; RES = 208
    def ring(step, idx):
        sl = step % 10
        if sl < 7: b = sl * 36 + idx * 4; return f'a[{b}:{b+3}]'
        b = 16 + (sl - 7) * 36 + idx * 4
        return f'v[{b}:{b+3}]'
    def gemm16(phase, NSTEP, KC, wbase, nsteps_total, xbuf, resbuf, outbuf, statbuf, flagslot, last_dummy):
        k('s_lshr_b32 s24, s17, 3'); k('s_and_b32 s25, s17, 7')
        if last_dummy:
            k('s_mul_i32 s26, s18, 14'); k('s_cmp_eq_u32 s18, 3'); k('s_cselect_b32 s27, 1, 0'); k('s_sub_u32 s26, s26, s27')
        else:
            k(f's_mul_i32 s26, s18, {NSTEP}')
        k(f's_mul_i32 s27, s25, {nsteps_total}'); k('s_add_u32 s27, s27, s26'); k('s_mul_i32 s27, s27, 5120'); k(f's_add_u32 s27, s27, {wbase}')
        if last_dummy:
            k('s_cmp_ge_u32 s18, 2'); k('s_cselect_b64 vcc, -1, 0')
            k('v_cndmask_b32 v13, v1, v8, vcc')
        sw = Soff(k, 's27', 's28')
        def wload(s):
            for nt in range(5):
                sg, imm = sw.get((s * 5 + nt) * 1024)
                vo = 'v13' if (last_dummy and s == NSTEP - 1) else 'v1'
                k(f'buffer_load_dwordx4 {ring(s, nt)}, {vo}, s[4:7], {sg} offen{off(imm)}')
        for s in range(min(10, NSTEP)): wload(s)
        k('s_lshl_b32 s29, s16, 3'); k('s_lshl_b32 s30, s24, 1'); k('s_add_u32 s29, s29, s30')
        k('s_lshr_b32 s30, s18, 1'); k('s_add_u32 s30, s30, s29')
        k(f's_mul_i32 s31, s30, {80*512}'); k('s_and_b32 s32, s18, 1'); k('s_lshl_b32 s32, s32, 8'); k('s_add_u32 s31, s31, s32')
        k(f's_mul_i32 s32, s25, {10*512}'); k('s_add_u32 s31, s31, s32')
        k('v_lshlrev_b32 v9, 9, v7'); k('v_lshl_add_u32 v9, v6, 4, v9')
        k('v_lshrrev_b32 v10, 1, v7'); k('v_lshlrev_b32 v10, 9, v10'); k('v_lshl_add_u32 v10, v6, 4, v10'); k('v_and_b32 v11, 1, v7'); k('v_lshl_add_u32 v10, v11, 3, v10')
        k('v_add_u32 v10, 4096, v10')
        k('s_add_u32 s33, s31, s19'); k(f's_add_u32 s33, s33, {resbuf}')
        k(f'buffer_load_dwordx4 v[{RES}:{RES+3}], v9, s[4:7], s33 offen {SC}')
        k(f'buffer_load_dwordx4 v[{RES+4}:{RES+7}], v9, s[4:7], s33 offen offset:2048 {SC}')
        k(f'buffer_load_dwordx2 v[{RES+8}:{RES+9}], v10, s[4:7], s33 offen {SC}')
        for mt in range(4):
            k(f's_add_u32 s34, s18, {mt}'); k('s_and_b32 s34, s34, 3')
            k('s_lshr_b32 s35, s34, 1'); k('s_add_u32 s35, s35, s29'); k(f's_mul_i32 s35, s35, {KC*512}')
            k('s_and_b32 s34, s34, 1'); k('s_lshl_b32 s34, s34, 8'); k('s_add_u32 s35, s35, s34')
            k('s_lshl_b32 s34, s26, 11'); k('s_add_u32 s35, s35, s34')
            k(f's_add_u32 s35, s35, {xbuf}'); k(f's_add_u32 s{40+mt}, s35, s19')
        if last_dummy: k('v_cndmask_b32 v12, v9, v8, vcc')
        if phase == 2:
            k(f's_add_u32 s36, s21, {FLAGS + flagslot*FLAG_SLOT}')
            poll(['s36'], 8)
        else:
            k('s_lshr_b32 s36, s17, 4'); k('s_lshl_b32 s36, s36, 4'); k('s_add_u32 s36, s36, s21'); k(f's_add_u32 s36, s36, {FLAGS + flagslot*FLAG_SLOT}')
            poll(['s36'], 4)
        stamp()
        sx = [Soff(k, f's{40+mt}', f's{44+mt}') for mt in range(4)]
        def xload(s):
            for mt in range(4):
                sg, imm = sx[mt].get(s * 2048)
                vo = 'v12' if (last_dummy and s == NSTEP - 1) else 'v9'
                k(f'buffer_load_dwordx4 {ring(s, 5+mt)}, {vo}, s[4:7], {sg} offen{off(imm)} {SC}')
        for s in range(min(10, NSTEP)): xload(s)
        for s in range(NSTEP):
            for mt in range(4):
                for nt in range(5):
                    acc = f'v[{A16+4*(mt*5+nt)}:{A16+4*(mt*5+nt)+3}]'
                    k(f'v_mfma_f32_16x16x32_bf16 {acc}, {ring(s, nt)}, {ring(s, 5+mt)}, {acc if s else 0}')
            if s + 10 < NSTEP:
                wload(s + 10); xload(s + 10)
        for mt in range(1, 4):
            k(f's_add_u32 s34, s18, {mt}'); k('s_and_b32 s34, s34, 3'); k('s_mul_i32 s34, s34, 15360'); k(f's_add_u32 s34, s34, {(mt-1)*5120}')
            k(f'v_add_u32 v{220+mt}, s34, v1')
        for mt in range(1, 4):
            for nt in range(5):
                a = A16 + 4 * (mt * 5 + nt)
                k(f'ds_write_b128 v{220+mt}, v[{a}:{a+3}]{off(nt*1024)}')
        k('s_mul_i32 s34, s18, 15360'); k('v_add_u32 v220, s34, v1')
        k.wait_all(vm=False, lg=True)
        k('s_barrier')
        for j in range(15):
            k(f'ds_read_b128 v[{16+4*j}:{19+4*j}], v220{off(j*1024)}')
        for j in range(10):
            k(f'v_lshlrev_b32 v{80+2*j}, 16, v{RES+j}'); k(f'v_and_b32 v{81+2*j}, 0xffff0000, v{RES+j}')
        for j in range(10):
            a = A16 + 2 * j
            k(f'v_pk_add_f32 v[{a}:{a+1}], v[{a}:{a+1}], v[{80+2*j}:{81+2*j}]')
        for src in range(3):
            for j in range(10):
                a = A16 + 2 * j; b = 16 + 20 * src + 2 * j
                k(f'v_pk_add_f32 v[{a}:{a+1}], v[{a}:{a+1}], v[{b}:{b+1}]')
        for j in range(10):
            k(f'v_cvt_pk_bf16_f32 v{100+j}, v{A16+2*j}, v{A16+2*j+1}')
        if phase == 2:
            k('s_add_u32 s33, s31, s19'); k(f's_add_u32 s33, s33, {outbuf}')
            k(f'buffer_store_dwordx4 v[100:103], v9, s[4:7], s33 offen {SC}')
            k(f'buffer_store_dwordx4 v[104:107], v9, s[4:7], s33 offen offset:2048 {SC}')
            k(f'buffer_store_dwordx2 v[108:109], v10, s[4:7], s33 offen {SC}')
        else:
            k('s_add_u32 s33, s31, s19'); k(f's_add_u32 s33, s33, {outbuf}')
            k('s_lshl_b32 s34, s30, 5'); k('s_and_b32 s35, s18, 1'); k('s_lshl_b32 s35, s35, 4'); k('s_add_u32 s34, s34, s35')
            k('s_mul_i32 s34, s34, 1280'); k('s_mul_i32 s35, s25, 160'); k('s_add_u32 s34, s34, s35')
            k('v_mul_u32_u24 v110, 1280, v6'); k('v_lshl_add_u32 v111, v7, 3, v110'); k('v_lshl_add_u32 v110, v7, 4, v110')
            k('v_add_u32 v112, 64, v110'); k('v_add_u32 v111, 128, v111')
            k('v_add_u32 v113, 2048, v9')
            k('s_cmp_eq_u32 s20, 1'); k('s_cselect_b64 vcc, -1, 0'); k('s_cselect_b32 s33, s34, s33')
            k('v_cndmask_b32 v110, v9, v110, vcc'); k('v_cndmask_b32 v112, v113, v112, vcc'); k('v_cndmask_b32 v111, v10, v111, vcc')
            k(f'buffer_store_dwordx4 v[100:103], v110, s[8:11], s33 offen {SC}')
            k(f'buffer_store_dwordx4 v[104:107], v112, s[8:11], s33 offen {SC}')
            k(f'buffer_store_dwordx2 v[108:109], v111, s[8:11], s33 offen {SC}')
        k('s_mov_b32 s34, 0x3f803f80')
        for r in range(4): k(f'v_mov_b32 v{114+r}, 0')
        for j in range(10):
            k(f'v_dot2_f32_bf16 v{114+2*(j&1)}, v{100+j}, s34, v{114+2*(j&1)}')
            k(f'v_dot2_f32_bf16 v{115+2*(j&1)}, v{100+j}, v{100+j}, v{115+2*(j&1)}')
        k('v_pk_add_f32 v[114:115], v[114:115], v[116:117]')
        k('v_mov_b32 v116, v114'); k('v_mov_b32 v117, v115')
        k('v_permlane16_swap_b32 v114, v116'); k('v_permlane16_swap_b32 v115, v117')
        k('v_pk_add_f32 v[114:115], v[114:115], v[116:117]')
        k('v_mov_b32 v116, v114'); k('v_mov_b32 v117, v115')
        k('v_permlane32_swap_b32 v114, v116'); k('v_permlane32_swap_b32 v115, v117')
        k('v_pk_add_f32 v[114:115], v[114:115], v[116:117]')
        k('v_lshlrev_b32 v116, 3, v6'); k('v_cmp_gt_u32 vcc, 16, v0'); k('v_cndmask_b32 v116, v8, v116, vcc')
        k('s_lshl_b32 s34, s30, 8'); k('s_and_b32 s35, s18, 1'); k('s_lshl_b32 s35, s35, 7'); k('s_add_u32 s34, s34, s35')
        k('s_lshl_b32 s35, s25, 14'); k('s_add_u32 s34, s34, s35'); k('s_add_u32 s34, s34, s19'); k(f's_add_u32 s34, s34, {statbuf}')
        k(f'buffer_store_dwordx2 v[114:115], v116, s[4:7], s34 offen {SC}')
        publish(phase)
        stamp()

    gemm16(2, 5, 80, WOP, 20, OB, XIN, XMID, SMID, 2, False)

    k('s_lshr_b32 s32, s17, 4'); k('s_and_b32 s33, s17, 15')
    k('s_mul_i32 s33, s33, 7'); k('s_min_u32 s33, s33, 101')
    k('s_add_u32 s34, s33, 60')
    k('s_mul_i32 s24, s34, 40960'); k(f's_add_u32 s24, s24, {WP32}')
    k('s_lshl_b32 s25, s34, 7'); k(f's_add_u32 s25, s25, {CSP}')
    gemm32_pre(7, 5)
    k('s_lshl_b32 s34, s16, 3'); k('s_lshl_b32 s35, s32, 2'); k('s_add_u32 s34, s34, s35'); k('s_add_u32 s34, s34, s18')
    k(f's_mul_i32 s30, s34, {80*512}'); k('s_add_u32 s30, s30, s19'); k(f's_add_u32 s30, s30, {XMID}')
    k('s_lshl_b32 s31, s34, 8'); k('s_add_u32 s31, s31, s19'); k(f's_add_u32 s31, s31, {SMID}')
    k('s_lshl_b32 s35, s32, 4'); k('s_add_u32 s35, s35, s21'); k(f's_add_u32 s35, s35, {FLAGS + 3*FLAG_SLOT}')
    poll(['s35'], 4)
    stamp()
    gemm32_post(7)
    c = math.sqrt(2 / math.pi); k1 = -2 * c * math.log2(math.e); k2 = k1 * 0.044715
    k(f'v_mul_f32 v66, {f32(k1)}, v64'); k('v_mul_f32 v68, v64, v64'); k('v_mul_f32 v68, v68, v64'); k(f'v_mul_f32 v68, {f32(k2)}, v68')
    k('v_mov_b32 v67, v66'); k('v_mov_b32 v69, v68'); k('v_mov_b32 v70, v57'); k('v_mov_b32 v71, v57')
    gemm32_loop(7, 5, False)
    k(f's_mul_i32 s36, s34, {216*512}'); k('s_lshl_b32 s37, s33, 10'); k('s_add_u32 s36, s36, s37'); k('s_add_u32 s36, s36, s19'); k(f's_add_u32 s36, s36, {HB}')
    k('s_add_u32 s37, s36, 4096')
    for t in range(7):
        a = ACC + 16 * t; tm = 72 + 8 * (t & 1); d = 16 + 4 * (t & 3)
        P = range(4)
        for j in P: k(f'v_pk_mul_f32 v[{tm+2*j}:{tm+2*j+1}], v[{a+2*j}:{a+2*j+1}], v[{a+2*j}:{a+2*j+1}]')
        for j in P: k(f'v_pk_fma_f32 v[{tm+2*j}:{tm+2*j+1}], v[{tm+2*j}:{tm+2*j+1}], v[68:69], v[66:67]')
        for j in P: k(f'v_pk_mul_f32 v[{tm+2*j}:{tm+2*j+1}], v[{tm+2*j}:{tm+2*j+1}], v[{a+2*j}:{a+2*j+1}]')
        for j in range(8): k(f'v_exp_f32 v{tm+j}, v{tm+j}')
        for j in P: k(f'v_pk_mul_f32 v[{a+2*j}:{a+2*j+1}], v[{a+2*j}:{a+2*j+1}], v[{a+8+2*j}:{a+8+2*j+1}]')
        for j in P: k(f'v_pk_fma_f32 v[{tm+2*j}:{tm+2*j+1}], v[{tm+2*j}:{tm+2*j+1}], v[70:71], v[70:71]')
        for j in range(8): k(f'v_rcp_f32 v{tm+j}, v{tm+j}')
        for j in P: k(f'v_pk_mul_f32 v[{a+2*j}:{a+2*j+1}], v[{a+2*j}:{a+2*j+1}], v[{tm+2*j}:{tm+2*j+1}]')
        for j in P: k(f'v_cvt_pk_bf16_f32 v{d+j}, v{a+2*j}, v{a+2*j+1}')
        k(f'buffer_store_dwordx4 v[{d}:{d+3}], v1, s[4:7], s{36+(t>>2)} offen{off((t&3)*1024)} {SC}')
    publish(3)
    stamp()

    k('s_cmp_eq_u32 s20, 1')
    k('s_cselect_b32 s8, s14, s12'); k('s_cselect_b32 s9, s15, s13'); k(f's_cselect_b32 s10, {T*D*2}, s6')
    gemm16(4, 14, 216, WDP, 54, HB, XMID, LSTRIDE + XIN, LSTRIDE + SIN, 4, True)

    k('s_add_u32 s20, s20, 1'); k(f's_add_u32 s19, s19, {LSTRIDE}'); k(f's_add_u32 s21, s21, {5*FLAG_SLOT}')
    k.settle()
    k('s_cmp_lt_u32 s20, 2'); k('s_cbranch_scc1 LAYER_LOOP')
    k.label(L_end)
    return k.text()

if __name__ == '__main__':
    print(gen_main())
```

```python
import re

_REG = re.compile(r'^(-?)(\|?)([vas])(\d+)$')
_RNG = re.compile(r'^(-?)([vas])\[(\d+):(\d+)\]$')

def regs_of(tok):
    tok = tok.strip()
    if tok.startswith('abs(') or tok.startswith('-abs('):
        tok = tok[tok.index('(') + 1:-1]
    if tok.startswith('neg('):
        tok = tok[4:-1]
    m = _REG.match(tok)
    if m:
        return {(m.group(3), int(m.group(4)))}
    m = _RNG.match(tok)
    if m:
        return {(m.group(2), i) for i in range(int(m.group(3)), int(m.group(4)) + 1)}
    if tok in ('vcc', 'exec', 'm0'):
        return {(tok, 0)}
    if tok in ('vcc_lo', 'vcc_hi'):
        return {('vcc', 0)}
    return set()

TRANS = ('v_exp_f32', 'v_log_f32', 'v_rcp_f32', 'v_rsq_f32', 'v_sqrt_f32', 'v_sin_f32', 'v_cos_f32')

class Ins:
    pass

def parse(text):
    t = text.split(';')[0].strip()
    parts = t.split(None, 1)
    mn = parts[0]
    rest = parts[1] if len(parts) > 1 else ''
    ops = []
    depth = 0; cur = ''
    for ch in rest:
        if ch in '[(': depth += 1
        if ch in '])': depth -= 1
        if ch == ',' and depth == 0:
            ops.append(cur.strip()); cur = ''
        else:
            cur += ch
    mods = ''
    if cur.strip():
        last = cur.strip().split(None, 1)
        ops.append(last[0])
        if len(last) > 1: mods = last[1]
    return mn, ops, mods

class K:
    def __init__(self):
        self.lines = []
        self.t = 0
        self.valu_w = {}
        self.trans_w = {}
        self.mfma_w = {}
        self.mfma_c = {}
        self.sgpr_valu_w = {}
        self.dot_w = {}
        self.m0_w = -100
        self.store_data = {}
        self.vmq = []
        self.lgq = []
        self.nlabel = 0
        self.nbytes_est = 0

    def raw(self, s):
        self.lines.append(s)

    def comment(self, s):
        self.lines.append('  ; ' + s)

    def nop(self, n):
        while n > 0:
            c = min(n, 16)
            self.lines.append(f'  s_nop {c-1}')
            self.t += c
            n -= c

    def newlabel(self, base='L'):
        self.nlabel += 1
        return f'{base}_{self.nlabel}'

    def label(self, name):
        self.lines.append(f'{name}:')

    def settle(self):
        need = 0
        for r, (t, p, f, s) in self.mfma_w.items():
            need = max(need, t + {2: 5, 4: 8, 8: 12, 16: 20}[p] - self.t + 1)
        for r, t in self.valu_w.items(): need = max(need, t + 3 - self.t + 1)
        for r, t in self.sgpr_valu_w.items(): need = max(need, t + 5 - self.t + 1)
        for r, t in self.store_data.items(): need = max(need, t + 2 - self.t + 1)
        need = max(need, self.m0_w + 1 - self.t + 1)
        if need > 0: self.nop(need)

    def snapshot(self):
        return (list(self.vmq), list(self.lgq))

    def restore(self, snap):
        self.vmq = list(snap[0]); self.lgq = list(snap[1])

    def _emit_wait(self, vm=None, lg=None):
        s = '  s_waitcnt'
        if vm is not None: s += f' vmcnt({min(vm,63)})'
        if lg is not None: s += f' lgkmcnt({min(lg,15)})'
        self.lines.append(s)
        self.t += 1

    def wait_vm_idx(self, p):
        n = len(self.vmq) - 1 - p
        self.vmq = self.vmq[p + 1:]
        if n <= 63: self._emit_wait(vm=n)
    def wait_lg_idx(self, p):
        if any(e[2] for e in self.lgq):
            self.lgq = []
            self._emit_wait(lg=0)
            return
        n = len(self.lgq) - 1 - p
        self.lgq = self.lgq[p + 1:]
        if n <= 15: self._emit_wait(lg=n)

    def wait_vm(self, tag):
        p = -1
        for i, e in enumerate(self.vmq):
            if e[1] == tag: p = i
        if p >= 0: self.wait_vm_idx(p)
    def wait_lg(self, tag):
        p = -1
        for i, e in enumerate(self.lgq):
            if e[1] == tag: p = i
        if p >= 0: self.wait_lg_idx(p)
    def wait_all(self, vm=True, lg=True, force=False):
        v = vm and (self.vmq or force); l = lg and (self.lgq or force)
        if v and l: self._emit_wait(vm=0, lg=0)
        elif v: self._emit_wait(vm=0)
        elif l: self._emit_wait(lg=0)
        if vm: self.vmq = []
        if lg: self.lgq = []

    def __call__(self, text, tag=None):
        for line in text.strip().split('\n'):
            line = line.strip()
            if not line or line.startswith(';'): continue
            self.ins(line, tag)

    def ins(self, text, tag=None):
        mn, ops, mods = parse(text)
        R = set(); W = set()
        kind = None
        if mn.startswith('v_mfma'):
            kind = 'mfma'
            W = regs_of(ops[0]); A = regs_of(ops[1]); B = regs_of(ops[2]); C = regs_of(ops[3])
            R = A | B | C
            passes = 8 if '32x32' in mn else 4
        elif mn.startswith('v_'):
            kind = 'valu'
            if mn.startswith('v_cmp'):
                W = regs_of(ops[0]); R = set().union(*[regs_of(o) for o in ops[1:]])
            elif mn.startswith('v_permlane') and 'swap' in mn:
                W = regs_of(ops[0]) | regs_of(ops[1]); R = set(W)
            elif mn in ('v_add_co_u32', 'v_addc_co_u32', 'v_sub_co_u32'):
                W = regs_of(ops[0]) | regs_of(ops[1]); R = set().union(*[regs_of(o) for o in ops[2:]])
            else:
                W = regs_of(ops[0]); R = set().union(*[regs_of(o) for o in ops[1:]]) if len(ops) > 1 else set()
                if mn.startswith('v_fmac') or mn.startswith('v_dot2c') or mn.startswith('v_pk_fmac') or mn.startswith('v_writelane'):
                    R |= regs_of(ops[0])
                if 'dpp' in mn or 'row_' in mods or 'quad_perm' in mods:
                    R |= regs_of(ops[0])
        elif mn.startswith('buffer_') or mn.startswith('global_'):
            kind = 'vmem'
            islds = ' lds' in (' ' + mods)
            if 'load' in mn and not islds:
                W = regs_of(ops[0]); R = set().union(*[regs_of(o) for o in ops[1:]])
            elif 'atomic' in mn:
                R = set().union(*[regs_of(o) for o in ops])
                if 'sc0' in mods: W = regs_of(ops[0])
            else:
                R = set().union(*[regs_of(o) for o in ops]) if ops else set()
            if islds: R.add(('m0', 0))
        elif mn.startswith('ds_'):
            kind = 'ds'
            if 'read' in mn or 'permute' in mn or 'swizzle' in mn:
                W = regs_of(ops[0]); R = set().union(*[regs_of(o) for o in ops[1:]])
            else:
                R = set().union(*[regs_of(o) for o in ops])
        elif mn.startswith('s_load') or mn.startswith('s_buffer_load') or mn in ('s_memtime', 's_memrealtime'):
            kind = 'smem'
            W = regs_of(ops[0]); R = set().union(*[regs_of(o) for o in ops[1:]]) if len(ops) > 1 else set()
        elif mn.startswith('s_'):
            kind = 'salu'
            if mn.startswith('s_cmp') or mn.startswith('s_cbranch') or mn in ('s_branch', 's_barrier', 's_nop', 's_waitcnt', 's_sleep', 's_setprio', 's_endpgm', 's_bitcmp1_b32', 's_bitcmp0_b32'):
                R = set().union(*[regs_of(o) for o in ops]) if ops else set()
            else:
                W = regs_of(ops[0]); R = set().union(*[regs_of(o) for o in ops[1:]]) if len(ops) > 1 else set()
                if 'saveexec' in mn: W.add(('exec', 0))
        else:
            raise ValueError('unknown instruction ' + text)
        if mn == 's_nop':
            self.lines.append('  ' + text); self.t += int(ops[0]) + 1; return
        if mn == 's_waitcnt':
            raise ValueError('use wait_* helpers')

        if tag == 'nodest': W = set()
        touched = R | W
        p = -1
        for i, e in enumerate(self.vmq):
            if e[0] & touched: p = i
        if p >= 0: self.wait_vm_idx(p)
        p = -1
        for i, e in enumerate(self.lgq):
            if e[0] & touched: p = i
        if p >= 0: self.wait_lg_idx(p)

        need = self.t
        def req(tprod, ws):
            nonlocal need
            need = max(need, tprod + ws + 1)
        tab_rw = {2: 5, 4: 8, 8: 12, 16: 20}
        tab_c = {2: 4, 4: 6, 8: 10, 16: 18}
        tab_war = {2: 1, 4: 3, 8: 7, 16: 15}
        if kind == 'mfma':
            for r in R:
                if r in self.valu_w: req(self.valu_w[r], 2)
            for r in (A | B):
                if r in self.mfma_w: req(self.mfma_w[r][0], tab_rw[self.mfma_w[r][1]])
            if C:
                cf = min(C); cs = len(C)
                for r in C:
                    if r in self.mfma_w:
                        t0, p0, f0, s0 = self.mfma_w[r]
                        if not (f0 == cf and s0 == cs and p0 == passes): req(t0, tab_c[p0])
            wf = min(W); wsz = len(W)
            for r in W:
                if r in self.mfma_w:
                    t0, p0, f0, s0 = self.mfma_w[r]
                    if not (f0 == wf and s0 == wsz and p0 == passes): req(t0, tab_c[p0])
        elif kind in ('valu', 'vmem', 'ds'):
            for r in touched:
                if r in self.mfma_w: req(self.mfma_w[r][0], tab_rw[self.mfma_w[r][1]])
            for r in W:
                if r in self.mfma_c: req(self.mfma_c[r][0], tab_war[self.mfma_c[r][1]])
                if r in self.store_data: req(self.store_data[r], 2)
        if kind in ('valu', 'vmem', 'ds', 'mfma'):
            for r in touched:
                if r in self.dot_w:
                    t0, mn0 = self.dot_w[r]
                    if not (mn0 == mn and r in regs_of(ops[3]) and r not in (regs_of(ops[1]) | regs_of(ops[2]))): req(t0, 3)
        if kind == 'valu':
            if mn not in TRANS:
                for r in R:
                    if r in self.trans_w: req(self.trans_w[r], 1)
            if mn.startswith('v_permlane') or 'dpp' in mn or 'row_' in mods or 'quad_perm' in mods:
                for r in R:
                    if r in self.valu_w: req(self.valu_w[r], 2)
            if mn.startswith('v_readlane') or mn.startswith('v_readfirstlane'):
                for r in R:
                    if r in self.valu_w: req(self.valu_w[r], 1)
            for r in R:
                if r in self.sgpr_valu_w: req(self.sgpr_valu_w[r], 4 if 'lane' in mn else 2)
            if mn.startswith('v_cndmask') and len(ops) == 3 and ('vcc', 0) in self.sgpr_valu_w:
                req(self.sgpr_valu_w[('vcc', 0)], 2)
        if kind in ('vmem', 'ds'):
            for r in R:
                if r in self.trans_w: req(self.trans_w[r], 1)
        if kind == 'vmem':
            for r in R:
                if r in self.sgpr_valu_w: req(self.sgpr_valu_w[r], 5)
            if ('m0', 0) in R: req(self.m0_w, 1)
        if kind in ('salu', 'smem'):
            for r in R:
                if r in self.sgpr_valu_w: req(self.sgpr_valu_w[r], 1)
        if need > self.t: self.nop(need - self.t)

        self.lines.append('  ' + text)
        t = self.t
        self.t += 1
        if kind == 'mfma':
            wf = min(W)
            for r in W:
                self.mfma_w[r] = (t, passes, wf, len(W)); self.valu_w.pop(r, None); self.trans_w.pop(r, None)
            for r in C: self.mfma_c[r] = (t, passes)
        elif kind == 'valu':
            for r in W:
                if r[0] in 'va' and r[0] != 'vcc':
                    self.valu_w[r] = t; self.mfma_w.pop(r, None)
                    if mn.startswith('v_dot'): self.dot_w[r] = (t, mn)
                    else: self.dot_w.pop(r, None)
                    if mn in TRANS: self.trans_w[r] = t
                    else: self.trans_w.pop(r, None)
                else:
                    self.sgpr_valu_w[r] = t
        elif kind == 'vmem':
            self.vmq.append((set(W), tag))
            if 'store' in mn and ('x4' in mn or 'x3' in mn):
                for r in regs_of(ops[0]) if mn.startswith('buffer') else regs_of(ops[1]): self.store_data[r] = t
            for r in W: self.mfma_w.pop(r, None); self.valu_w.pop(r, None)
        elif kind == 'ds':
            self.lgq.append((set(W), tag, False))
            for r in W: self.mfma_w.pop(r, None); self.valu_w.pop(r, None)
        elif kind == 'smem':
            self.lgq.append((set(W), tag, True))
        elif kind == 'salu':
            for r in W:
                self.sgpr_valu_w.pop(r, None)
                if r == ('m0', 0): self.m0_w = t

    def text(self):
        return '\n'.join(self.lines) + '\n'
```

```python
T = 2048; D = 640; H = 32; DH = 20; F = 1728
def al(x, a=4096): return (x + a - 1) // a * a

FLAGS = 0
FLAG_SLOT = 8 * 128
off = 16384
TS = off; off += 65536 * 2
WP32 = off; off = al(off + 168 * 40960)
CSP = off; off = al(off + 10 * 168 * 32 * 4)
WOP = off; off = al(off + 8 * 20 * 5 * 1024)
WDP = off; off = al(off + 8 * 54 * 5 * 1024)
LBASE = off
o = 0
XIN = o; o = al(o + T * D * 2)
SIN = o; o = al(o + 8 * T * 8)
HSQ = 128 * 768
HSK = 129 * 768
HSV = 65 * 1536
QP = o; o = al(o + H * HSQ)
KP = o; o = al(o + H * HSK)
VP = o; o = al(o + H * HSV)
OB = o; o = al(o + T * D * 2)
XMID = o; o = al(o + T * D * 2)
SMID = o; o = al(o + 8 * T * 8)
HB = o; o = al(o + T * F * 2)
LSTRIDE = o
WS_USED = LBASE + 2 * LSTRIDE + al(T * D * 2) + al(8 * T * 8)
OOB = 0x40000000
assert WS_USED < OOB
GU_START = [min(7 * g, 101) for g in range(16)]
if __name__ == '__main__':
    for n in 'WP32 CSP WOP WDP LBASE XIN SIN QP KP VP OB XMID SMID HB LSTRIDE WS_USED'.split():
        print(n, hex(globals()[n]), globals()[n])
```

```python
import sys
sys.path.insert(0, 'dev')
from asmlib import *
from gen_k0 import gen_k0, K0_GRID
import gen_main
def build(path, ts=False, extra_trivial=0):
    class O: pass
    O.ts = ts
    b0, vg, sg = gen_k0()
    bm = gen_main.gen_main(O)
    launches = [('prep_kernel', K0_GRID, 256, 0), ('main_kernel', 256, 256, gen_main.LDS_BYTES)]
    ks = {'prep_kernel': (b0, vg, sg, vg), 'main_kernel': (bm, 512, 96, 256)}
    for i in range(extra_trivial):
        launches.append((f'triv{i}_kernel', 256, 256, 0)); ks[f'triv{i}_kernel'] = ('', 32, 32, 32)
    open(path, 'w').write(make_file(launches, ks))
if __name__ == '__main__':
    out = sys.argv[1] if len(sys.argv) > 1 else 'interleave_layers__sliding_block__glu_gated_geglu__prompt.s'
    build(out, ts='ts' in sys.argv[2:], extra_trivial=int(sys.argv[sys.argv.index('triv')+1]) if 'triv' in sys.argv else 0)
```

```python
import sys
sys.path.insert(0, 'dev')
from kasm import K
from layout import *

NJ_QKV = 300; NJ_GU = 540; NJ_WO = 100; NJ_WD = 270; NJ_X = 256; NJ_PAD = 64
J_GU = NJ_QKV; J_WO = J_GU + NJ_GU; J_WD = J_WO + NJ_WO; J_X = J_WD + NJ_WD; J_PAD = J_X + NJ_X; J_FLAG = J_PAD + NJ_PAD
NJOBS = J_FLAG + 1
K0_GRID = (NJOBS + 3) // 4

def magic(d, maxx):
    for sh in range(8, 24):
        m = (1 << sh) // d + 1
        if all((x * m) >> sh == x // d for x in range(maxx + 1)) and m * maxx < (1 << 31) and m < (1 << 24):
            return m, sh
    raise ValueError

def sdiv(k, dst, src, d, maxx):
    m, sh = magic(d, maxx)
    k(f's_mul_i32 {dst}, {src}, {m}')
    k(f's_lshr_b32 {dst}, {dst}, {sh}')

def vdiv(k, dst, src, d, maxx):
    m, sh = magic(d, maxx)
    k(f'v_mul_u32_u24 {dst}, {m}, {src}')
    k(f'v_lshrrev_b32 {dst}, {sh}, {dst}')

def gen_k0():
    k = K()
    k('s_load_dwordx16 s[4:19], s[0:1], 0')
    k('s_load_dwordx2 s[24:25], s[0:1], 72')
    k('v_lshrrev_b32 v1, 6, v0')
    k('v_and_b32 v0, 63, v0')
    k('v_readfirstlane_b32 s3, v1')
    k('s_lshl_b32 s2, s2, 2')
    k('s_add_u32 s2, s2, s3')
    k('v_and_b32 v2, 7, v0')
    k('v_lshrrev_b32 v3, 3, v0')
    k.wait_all()
    k('s_mov_b32 s28, s24'); k('s_mov_b32 s29, s25'); k(f's_mov_b32 s30, {WS_USED}'); k('s_mov_b32 s31, 0x20000')
    k('s_mov_b32 s23, 0x20000')
    k('s_mov_b32 s20, s6'); k('s_mov_b32 s21, s7'); k(f's_mov_b32 s22, {640*1920*2}')
    L_gu, L_wo, L_wd, L_x, L_pad, L_flag, L_end, L_pack, L_wodest, L_p32 = [k.newlabel('K0') for _ in range(10)]
    k(f's_cmp_ge_u32 s2, {NJOBS}'); k(f's_cbranch_scc1 {L_end}')
    k(f's_cmp_ge_u32 s2, {J_FLAG}'); k(f's_cbranch_scc1 {L_flag}')
    k(f's_cmp_ge_u32 s2, {J_PAD}'); k(f's_cbranch_scc1 {L_pad}')
    k(f's_cmp_ge_u32 s2, {J_X}'); k(f's_cbranch_scc1 {L_x}')
    k(f's_cmp_ge_u32 s2, {J_WD}'); k(f's_cbranch_scc1 {L_wd}')
    k(f's_cmp_ge_u32 s2, {J_WO}'); k(f's_cbranch_scc1 {L_wo}')
    k(f's_cmp_ge_u32 s2, {J_GU}'); k(f's_cbranch_scc1 {L_gu}')

    def src_plain():
        k('s_lshl_b32 s36, s33, 3')
        k('v_add_u32 v42, s36, v3')
        k('s_lshl_b32 s37, s32, 3')
        k('v_mul_lo_u32 v4, v42, s37')
        k('s_lshl_b32 s36, s34, 7')
        k('v_lshl_add_u32 v4, v2, 4, v4')
        k('v_add_u32 v4, s36, v4')
        k('s_lshl_b32 s36, s32, 2')
        k('v_add_u32 v5, s36, v4')

    sdiv(k, 's33', 's2', 30, 300)
    k('s_mul_i32 s36, s33, 30'); k('s_sub_u32 s34, s2, s36')
    k('s_mov_b32 s32, 3840')
    src_plain()
    for e, dst in ((0, 'v40'), (1, 'v41')):
        k('s_lshl_b32 s36, s34, 4')
        k('v_lshl_add_u32 v43, v2, 1, s36')
        if e: k('v_add_u32 v43, 1, v43')
        vdiv(k, 'v44', 'v43', 160, 480)
        k('v_mul_u32_u24 v45, 160, v44'); k('v_sub_u32 v45, v43, v45')
        vdiv(k, 'v46', 'v45', 5, 160)
        k('v_mul_u32_u24 v47, 5, v46'); k('v_sub_u32 v47, v45, v47')
        k('v_and_b32 v48, 1, v47'); k('v_lshlrev_b32 v48, 1, v48'); k('v_lshrrev_b32 v49, 1, v47'); k('v_or_b32 v48, v48, v49')
        k('v_cmp_gt_u32 vcc, 2, v44')
        k('v_cndmask_b32 v48, v47, v48, vcc')
        k('v_lshlrev_b32 v48, 2, v48'); k('v_lshl_add_u32 v48, v46, 4, v48')
        k('v_lshlrev_b32 v49, 2, v46'); k('v_add_u32 v49, 512, v49')
        k('v_cmp_eq_u32 vcc, 4, v47')
        k('v_cndmask_b32 v48, v48, v49, vcc')
        k('v_mul_u32_u24 v49, 640, v44')
        k(f'v_add_u32 {dst}, v48, v49')
    k.settle(); k(f's_branch {L_p32}')

    k.label(L_gu)
    k(f's_sub_u32 s38, s2, {J_GU}')
    k('s_cmp_ge_u32 s38, 270')
    k('s_cselect_b32 s20, s14, s12'); k('s_cselect_b32 s21, s15, s13')
    k('s_cselect_b32 s39, 16, 0')
    k('s_cselect_b32 s36, 270, 0'); k('s_sub_u32 s38, s38, s36')
    k(f's_mov_b32 s22, {640*1728*2}')
    sdiv(k, 's33', 's38', 27, 270)
    k('s_mul_i32 s36, s33, 27'); k('s_sub_u32 s34, s38, s36')
    k('s_mov_b32 s32, 3456')
    src_plain()
    k('s_lshl_b32 s36, s34, 2'); k('s_add_u32 s36, s36, 60'); k('s_lshl_b32 s36, s36, 5'); k('s_add_u32 s36, s36, s39')
    k('v_lshrrev_b32 v43, 1, v2'); k('v_lshl_add_u32 v43, v43, 5, s36')
    k('v_and_b32 v44, 1, v2'); k('v_lshl_add_u32 v40, v44, 2, v43')
    k('v_add_u32 v41, 8, v40')
    k.label(L_p32)
    k('s_mov_b32 s36, 40960')
    for pr, dst in (('v40', 'v6'), ('v41', 'v7')):
        k(f'v_lshrrev_b32 v43, 5, {pr}'); k('v_mul_lo_u32 v43, v43, s36')
        k(f'v_and_b32 v44, 31, {pr}'); k('v_lshl_add_u32 v43, v44, 4, v43')
        k('v_lshl_add_u32 v43, v42, 9, v43')
        k(f'v_add_u32 {dst}, {WP32}, v43')
    k('s_mov_b32 s35, 1')
    k.settle(); k(f's_branch {L_pack}')

    k.label(L_wo)
    k(f's_sub_u32 s38, s2, {J_WO}')
    k('s_mov_b32 s20, s8'); k('s_mov_b32 s21, s9'); k(f's_mov_b32 s22, {640*640*2}')
    sdiv(k, 's33', 's38', 10, 100)
    k('s_mul_i32 s36, s33, 10'); k('s_sub_u32 s34, s38, s36')
    k('s_mov_b32 s32, 1280')
    k('s_lshl_b32 s36, s33, 3')
    k('v_add_u32 v42, s36, v3')
    k('v_lshrrev_b32 v43, 1, v42'); k('v_mul_u32_u24 v43, 20, v43'); k('v_and_b32 v44, 1, v42'); k('v_lshl_add_u32 v43, v44, 3, v43')
    k('v_mul_u32_u24 v44, 40, v42'); k(f'v_subrev_u32 v44, {64*40-16}, v44')
    k('v_cmp_gt_u32 vcc, 64, v42')
    k('v_cndmask_b32 v43, v44, v43, vcc')
    k('v_mov_b32 v45, 20'); k('v_cndmask_b32 v45, v45, 4, vcc')
    k('v_add_u32 v45, v45, v43')
    k('s_lshl_b32 s36, s34, 7')
    k('v_lshl_add_u32 v46, v2, 4, s36')
    k('v_mad_u32_u24 v4, v43, s32, v46'); k('v_mad_u32_u24 v5, v45, s32, v46')
    k(f's_mov_b32 s39, {20*5*1024}'); k(f's_mov_b32 s40, {WOP}')
    k.settle(); k(f's_branch {L_wodest}')

    k.label(L_wd)
    k(f's_sub_u32 s38, s2, {J_WD}')
    k('s_mov_b32 s20, s16'); k('s_mov_b32 s21, s17'); k(f's_mov_b32 s22, {1728*640*2}')
    sdiv(k, 's33', 's38', 10, 270)
    k('s_mul_i32 s36, s33, 10'); k('s_sub_u32 s34, s38, s36')
    k('s_mov_b32 s32, 1280')
    src_plain()
    k(f's_mov_b32 s39, {54*5*1024}'); k(f's_mov_b32 s40, {WDP}')
    k.label(L_wodest)
    k('v_lshrrev_b32 v50, 2, v42'); k('v_mul_u32_u24 v50, 5120, v50'); k('v_and_b32 v51, 3, v42'); k('v_lshl_add_u32 v50, v51, 8, v50')
    k('v_add_u32 v50, s40, v50')
    for e, dst in ((0, 'v6'), (1, 'v7')):
        k('s_lshl_b32 s36, s34, 4')
        k('v_lshl_add_u32 v43, v2, 1, s36')
        if e: k('v_add_u32 v43, 1, v43')
        vdiv(k, 'v44', 'v43', 20, 160)
        k('v_mul_u32_u24 v45, 20, v44'); k('v_sub_u32 v45, v43, v45')
        k('v_lshrrev_b32 v46, 3, v45'); k('v_lshlrev_b32 v46, 11, v46'); k('v_and_b32 v47, 1, v45'); k('v_lshl_add_u32 v46, v47, 10, v46')
        k('v_bfe_u32 v47, v45, 1, 2'); k('v_lshl_add_u32 v46, v47, 6, v46')
        k('v_lshlrev_b32 v47, 6, v45'); k(f'v_add_u32 v47, {4096-1024}, v47')
        k('v_cmp_gt_u32 vcc, 16, v45')
        k('v_cndmask_b32 v46, v47, v46, vcc')
        k('v_mul_lo_u32 v44, v44, s39')
        k(f'v_add3_u32 {dst}, v44, v46, v50')
    k('s_mov_b32 s35, 0')

    k.settle()
    k.label(L_pack)
    k('s_mov_b32 s41, 0'); k('s_mov_b32 s42, s32'); k('s_lshl_b32 s43, s32, 1'); k('s_add_u32 s44, s43, s32')
    for j in range(8):
        k(f'buffer_load_dwordx4 v[{8+4*j}:{11+4*j}], v{4+(j>>2)}, s[20:23], s{41+(j&3)} offen')
    k('s_mov_b32 s45, 0x05040100'); k('s_mov_b32 s46, 0x07060302'); k('s_mov_b32 s47, 0x3f803f80')
    for c in range(8):
        d = 52 + 4 * c
        for jp in range(4):
            k(f'v_perm_b32 v{d+jp}, v{8+4*(2*jp+1)+(c>>1)}, v{8+4*(2*jp)+(c>>1)}, s{45+(c&1)}')
        k(f'buffer_store_dwordx4 v[{d}:{d+3}], v{6+(c>>2)}, s[28:31], 0 offen offset:{(c&3)*16}')
    k('s_cmp_eq_u32 s35, 0'); k.settle(); k(f's_cbranch_scc1 {L_end}')
    for c in range(8):
        d = 52 + 4 * c
        k(f'v_mov_b32 v{8+c}, 0')
    for jp in range(4):
        for c in range(8):
            d = 52 + 4 * c
            k(f'v_dot2_f32_bf16 v{8+c}, v{d+jp}, s47, v{8+c}')
    k.nop(3)
    for c in range(4):
        k(f'v_permlane32_swap_b32 v{8+c}, v{12+c}')
    for c in range(4):
        k(f'v_add_f32 v{8+c}, v{8+c}, v{12+c}')
    for c in range(2):
        k(f'v_permlane16_swap_b32 v{8+c}, v{10+c}')
    for c in range(2):
        k(f'v_add_f32 v{8+c}, v{8+c}, v{10+c}')
    for c in range(2):
        k(f'v_add_f32_dpp v{10+c}, v{8+c}, v{8+c} row_ror:8 row_mask:0xf bank_mask:0xf')
    k('v_and_b32 v12, 1, v3'); k('v_cmp_eq_u32 vcc, 1, v12')
    k('v_cndmask_b32 v10, v10, v11, vcc')
    k('v_cmp_gt_u32 vcc, 4, v3')
    k('v_cndmask_b32 v13, v41, v40, vcc')
    k('v_and_b32 v14, 3, v3'); k('v_add_lshl_u32 v13, v13, v14, 2')
    k(f's_mul_i32 s36, s33, {168*128}'); k(f's_add_u32 s36, s36, {CSP}')
    k('buffer_store_dword v10, v13, s[28:31], s36 offen')
    k.settle(); k(f's_branch {L_end}')

    k.vmq = []; k.lgq = []
    k.label(L_x)
    k(f's_sub_u32 s38, s2, {J_X}')
    k('s_mov_b32 s20, s4'); k('s_mov_b32 s21, s5'); k(f's_mov_b32 s22, {2048*640*2}')
    k('s_lshr_b32 s33, s38, 2')
    k('s_and_b32 s34, s38, 3')
    k('v_and_b32 v2, 31, v0'); k('v_lshrrev_b32 v3, 5, v0')
    k('s_lshl_b32 s36, s34, 1'); k('v_add_u32 v3, s36, v3')
    k('s_lshl_b32 s36, s33, 5'); k('v_add_u32 v6, s36, v2')
    k('v_mul_u32_u24 v4, 1280, v6'); k('v_mul_u32_u24 v5, 160, v3'); k('v_add_u32 v4, v4, v5')
    for e in range(10):
        k(f'buffer_load_dwordx4 v[{8+4*e}:{11+4*e}], v4, s[20:23], 0 offen offset:{16*e}')
    k('v_mul_u32_u24 v5, 5120, v3'); k('v_lshl_add_u32 v5, v2, 4, v5')
    k(f's_mul_i32 s36, s33, {80*512}'); k(f's_add_u32 s36, s36, {LBASE+XIN}'); k('s_add_u32 s37, s36, 2560')
    k('s_mov_b32 s47, 0x3f803f80')
    k('v_mov_b32 v50, 0'); k('v_mov_b32 v51, 0'); k('v_mov_b32 v52, 0'); k('v_mov_b32 v53, 0')
    for e in range(10):
        k(f'buffer_store_dwordx4 v[{8+4*e}:{11+4*e}], v5, s[28:31], s{36+(e>=5)} offen offset:{512*(e%5)}')
        for r in range(4):
            k(f'v_dot2_f32_bf16 v{50+(r&1)*2}, v{8+4*e+r}, s47, v{50+(r&1)*2}')
            k(f'v_dot2_f32_bf16 v{51+(r&1)*2}, v{8+4*e+r}, v{8+4*e+r}, v{51+(r&1)*2}')
    k.nop(3)
    k('v_add_f32 v50, v50, v52'); k('v_add_f32 v51, v51, v53')
    k('v_lshlrev_b32 v7, 14, v3'); k('v_lshl_add_u32 v7, v6, 3, v7')
    k(f's_mov_b32 s36, {LBASE+SIN}')
    k('buffer_store_dwordx2 v[50:51], v7, s[28:31], s36 offen')
    k.settle(); k(f's_branch {L_end}')

    k.vmq = []; k.lgq = []
    k.label(L_pad)
    k(f's_sub_u32 s38, s2, {J_PAD}')
    k('s_lshr_b32 s33, s38, 5'); k('s_and_b32 s34, s38, 31')
    k(f's_mul_i32 s33, s33, {LSTRIDE}'); k(f's_add_u32 s33, s33, {LBASE}')
    k(f's_mul_i32 s36, s34, {HSK}'); k('s_add_u32 s36, s36, s33'); k(f's_add_u32 s36, s36, {KP}')
    k(f's_mul_i32 s37, s34, {HSV}'); k('s_add_u32 s37, s37, s33'); k(f's_add_u32 s37, s37, {VP}')
    k('v_mov_b32 v8, 0'); k('v_mov_b32 v9, 0'); k('v_mov_b32 v10, 0'); k('v_mov_b32 v11, 0')
    k('v_lshlrev_b32 v4, 4, v0')
    k('buffer_store_dwordx4 v[8:11], v4, s[28:31], s37 offen')
    k('s_lshl_b32 s39, s38, 10'); k(f's_add_u32 s39, s39, {QFLAG}')
    k('buffer_store_dwordx4 v[8:11], v4, s[28:31], s39 offen')
    k('v_lshlrev_b32 v5, 2, v0')
    k('buffer_store_dword v8, v5, s[28:31], s37 offen offset:1024')
    k('v_mov_b32 v12, 0'); k('v_mov_b32 v13, 0'); k('v_mov_b32 v15, 0')
    k('v_mov_b32 v16, 0xf14a')
    k('v_cmp_le_u32 vcc, 32, v0')
    k('v_cndmask_b32 v14, 0, v16, vcc')
    k(f'v_mov_b32 v17, {OOB}')
    k('v_cmp_gt_u32 vcc, 48, v0')
    k('v_cndmask_b32 v4, v17, v4, vcc')
    k('buffer_store_dwordx4 v[12:15], v4, s[28:31], s36 offen')
    k.settle(); k(f's_branch {L_end}')

    k.vmq = []; k.lgq = []
    k.label(L_flag)
    k('v_lshlrev_b32 v4, 4, v0')
    for r in range(4): k(f'v_mov_b32 v{8+r}, 0x01010101'); k(f'v_mov_b32 v{12+r}, 0')
    k(f'buffer_store_dwordx4 v[8:11], v4, s[28:31], 0 offen')
    for sl in range(1, 13):
        k(f's_mov_b32 s36, {FLAGS + sl*FLAG_SLOT}')
        k(f'buffer_store_dwordx4 v[12:15], v4, s[28:31], s36 offen')
    k.label(L_end)
    return k.text(), 88, 56

if __name__ == '__main__':
    print(gen_k0()[0])
```

```python
import sys, math, struct
sys.path.insert(0, 'dev')
from kasm import K
from layout import *

def f32(x): return '0x%08x' % struct.unpack('<I', struct.pack('<f', x))[0]

POLL_LIMIT = 60000
LDS_BYTES = 163840
AUGL = 147456
MISC = AUGL + 6144
KB = 1024

def off(imm): return f' offset:{imm}' if imm else ''

def merge(main, side):
    n = len(main); m = len(side)
    if m == 0: return list(main)
    if n == 0: return list(side)
    out = []; j = 0
    for i, x in enumerate(main):
        out.append(x)
        while j < m and (j * n) // m <= i:
            out.append(side[j]); j += 1
    return out

class Soff:
    def __init__(self, base, tmp):
        self.base = base; self.tmp = tmp; self.cur = None
    def get(self, c):
        hi = c & ~4095; lo = c & 4095
        if hi == 0: return [], self.base, lo
        pre = []
        if self.cur != hi:
            pre = [f's_add_u32 {self.tmp}, {self.base}, {hi}']; self.cur = hi
        return pre, self.tmp, lo

def gen_main(opt):
    k = K()
    LOC = '' if opt.local else 'sc1'
    LD = opt.ld if opt.local else 'sc1'
    LDX = 'sc1'
    L_end = 'MAIN_END'

    def emit(items):
        for x in items:
            if isinstance(x, str): k(x)
            elif isinstance(x, tuple): k(x[0], tag=x[1])
            elif callable(x): x()
            else: emit(x)

    fine = []
    def fstamp(name):
        if not opt.fine: return
        if opt.fine != 'all' and not name.startswith(opt.fine): return
        if opt.fine == 'all' and not name.startswith('P'): return
        i = len(fine)
        k.wait_all(vm=False, lg=True)
        k('s_memrealtime s[80:81]' if opt.fine == 'all' else 's_memtime s[80:81]')
        k.wait_all(vm=False, lg=True)
        k(f'v_writelane_b32 v255, s80, {i}')
        fine.append(name)
    def fflush():
        if not opt.fine: return
        k('s_lshl_b32 s62, s2, 2'); k('s_add_u32 s62, s62, s18'); k('s_lshl_b32 s62, s62, 1'); k('s_add_u32 s62, s62, s20')
        k('s_lshl_b32 s62, s62, 8'); k(f's_add_u32 s62, s62, {WS_USED - 0x100000}')
        k('v_lshlrev_b32 v14, 2, v0')
        k('buffer_store_dword v255, v14, s[4:7], s62 offen')
        opt.fine_names = list(fine)

    def ldsaddr(a): return f'v{1 + (a >> 16)}', a & 0xffff

    QSLOT = [64*KB + 16*KB*c for c in range(5)] + [16*KB*c for c in range(4)] + [64*KB]
    GSLOT = [60*KB, 88*KB, 116*KB, 0, 28*KB] * 2
    def dma_q(c, t):
        return [f's_add_u32 s32, s22, {t*40960 + c*4096}', f's_add_u32 m0, s26, {QSLOT[c] + t*KB}', ('buffer_load_dwordx4 v1, s[4:7], s32 offen lds', ('W', c))]
    def dma_g(c, t):
        return [f's_add_u32 s32, s23, {t*40960 + c*4096}', f's_add_u32 m0, s27, {GSLOT[c] + t*KB}', ('buffer_load_dwordx4 v1, s[4:7], s32 offen lds', ('W', c))]
    def wo_wreg(f): return f'a[{176+4*f}:{179+4*f}]' if f < 20 else f'v[{32+4*(f-20)}:{35+4*(f-20)}]'
    def dn_wreg(f):
        f %= 50
        return f'a[{216+4*f}:{219+4*f}]' if f < 10 else f'a[{4*(f-10)}:{4*(f-10)+3}]'
    def wload(base, f, reg, vo='v1'):
        c = f * KB
        if c < 4096: return [f'buffer_load_dwordx4 {reg}, {vo}, s[4:7], {base} offen{off(c)}']
        return [f's_add_u32 s33, {base}, {c & ~4095}', f'buffer_load_dwordx4 {reg}, {vo}, s[4:7], s33 offen{off(c & 4095)}']

    k('s_cmp_ge_u32 s2, 256'); k(f's_cbranch_scc1 {L_end}')
    k('s_load_dwordx2 s[14:15], s[0:1], 56')
    k('s_load_dwordx2 s[12:13], s[0:1], 72')
    k('v_lshrrev_b32 v1, 6, v0')
    k('v_and_b32 v0, 63, v0')
    k('v_readfirstlane_b32 s18, v1')
    if opt.local:
        k('s_getreg_b32 s16, hwreg(HW_REG_XCC_ID)'); k('s_and_b32 s16, s16, 7')
    else:
        k('s_and_b32 s16, s2, 7')
    k('s_lshr_b32 s17, s2, 3')
    k('v_lshlrev_b32 v1, 4, v0'); k('v_add_u32 v2, 0x10000, v1'); k('v_add_u32 v3, 0x20000, v1')
    k('v_and_b32 v4, 31, v0'); k('v_lshrrev_b32 v5, 5, v0')
    k('v_and_b32 v6, 15, v0'); k('v_lshrrev_b32 v7, 4, v0')
    k(f'v_mov_b32 v8, {OOB}')
    k.wait_all()
    k('s_mov_b32 s4, s12'); k('s_mov_b32 s5, s13'); k(f's_mov_b32 s6, {WS_USED}'); k('s_mov_b32 s7, 0x20000')
    k('s_mov_b32 s8, s12'); k('s_mov_b32 s9, s13'); k(f's_mov_b32 s10, {WS_USED}'); k('s_mov_b32 s11, 0x20000')
    k('s_mov_b32 s20, 0'); k(f's_mov_b32 s19, {LBASE}')
    k('s_lshl_b32 s21, s16, 7')
    k('s_lshl_b32 s26, s18, 12'); k('s_mul_i32 s27, s18, 7168')
    k('s_mov_b32 s31, 0')
    fstamp('P_start')
    if opt.local:
        lab = k.newlabel('CL0')
        k('v_mov_b32 v61, 0')
        k.settle()
        k('s_cmp_lg_u32 s18, 0'); k(f's_cbranch_scc1 {lab}')
        k('s_lshl_b32 s36, s17, 2'); k('s_add_u32 s36, s36, s21'); k(f's_add_u32 s36, s36, {CLAIM}')
        k('v_mov_b32 v60, 1'); k('v_mov_b32 v61, 0')
        k('s_mov_b64 exec, 1')
        k.raw('  buffer_atomic_add v60, v61, s[4:7], s36 offen sc0'); k.t += 1
        k('s_mov_b64 exec, -1')
        k.label(lab)
    k.settle()
    k.label('ROLE')
    k('s_min_u32 s36, s17, 29')
    k('s_cmp_ge_u32 s36, 15'); k('s_cselect_b32 s28, 1, 0'); k('s_cselect_b32 s29, 15, 0'); k('s_sub_u32 s29, s36, s29')
    k('s_lshl_b32 s37, s18, 10')
    k(f's_mul_i32 s22, s29, {4*40960}'); k(f's_add_u32 s22, s22, {WP32}'); k('s_add_u32 s22, s22, s37')
    k('s_and_b32 s30, s17, 15'); k('s_mul_i32 s30, s30, 7'); k('s_min_u32 s30, s30, 101')
    k('s_add_u32 s38, s30, 60'); k('s_mul_i32 s23, s38, 40960'); k(f's_add_u32 s23, s23, {WP32}'); k('s_add_u32 s23, s23, s37')
    k('s_and_b32 s39, s17, 7')
    k('s_mul_i32 s24, s39, 20'); k('s_mul_i32 s40, s18, 5'); k('s_add_u32 s24, s24, s40'); k('s_mul_i32 s24, s24, 5120'); k(f's_add_u32 s24, s24, {WOP}')
    k('s_mul_i32 s34, s18, 14'); k('s_cmp_eq_u32 s18, 3'); k('s_cselect_b32 s40, 1, 0'); k('s_sub_u32 s34, s34, s40')
    k('s_mul_i32 s25, s39, 54'); k('s_add_u32 s25, s25, s34'); k('s_mul_i32 s25, s25, 5120'); k(f's_add_u32 s25, s25, {WDP}')
    k(f'v_mul_u32_u24 v9, {5*168*128}, v5'); k('v_lshl_add_u32 v9, v4, 2, v9')
    for j in range(3):
        k('s_mul_i32 s40, s18, 3'); k(f's_add_u32 s40, s40, {j}'); k('s_min_u32 s40, s40, 10')
        k('s_lshl_b32 s41, s29, 2'); k('s_add_u32 s41, s41, s40')
        k('s_add_u32 s42, s38, s40'); k('s_sub_u32 s42, s42, 4')
        k('s_cmp_lt_u32 s40, 4'); k('s_cselect_b32 s41, s41, s42')
        k('s_lshl_b32 s41, s41, 7'); k(f's_add_u32 s41, s41, {CSP}')
        k(f's_lshl_b32 s{44+j}, s40, 9')
        for p in range(5):
            k(f'buffer_load_dword v{16+5*j+p}, v9, s[4:7], s41 offen')
            if p < 4: k(f's_add_u32 s41, s41, {168*128}')
    for c in range(5):
        for t in range(4): emit(dma_q(c, t))
    for j in range(3):
        b = 16 + 5 * j
        k(f'v_add_f32 v{b}, v{b}, v{b+1}'); k(f'v_add_f32 v{b+2}, v{b+2}, v{b+3}')
        k(f'v_add_f32 v{b}, v{b}, v{b+4}'); k(f'v_mov_b32 v{b+1}, 0'); k(f'v_add_f32 v{b}, v{b}, v{b+2}')
    for j in range(3):
        b = 16 + 5 * j
        k(f'v_permlane32_swap_b32 v{b}, v{b+1}')
    for j in range(3):
        b = 16 + 5 * j
        k(f'v_add_f32 v{b}, v{b}, v{b+1}')
        k(f'v_cvt_pk_bf16_f32 v{b+2}, v{b}, v{b}')
        k(f'v_and_b32 v{b+3}, 0xffff0000, v{b+2}')
        k(f'v_sub_f32 v{b+3}, v{b}, v{b+3}')
        k(f'v_cvt_pk_bf16_f32 v{32+2*j}, v{b}, v{b+3}')
        k(f'v_and_b32 v{33+2*j}, 0xffff, v{b+2}')
        k(f'v_lshl_add_u32 v10, v0, 3, s{44+j}'); k(f'v_add_u32 v10, {AUGL}, v10')
        k(f'ds_write_b64 v10, v[{32+2*j}:{33+2*j}]')
    if opt.local:
        lab = k.newlabel('CL1'); lp = k.newlabel('CLP'); ok = k.newlabel('CLOK'); skip = k.newlabel('CLSK')
        k.settle()
        k('s_cmp_lg_u32 s31, 0'); k(f's_cbranch_scc1 {skip}')
        k('s_cmp_lg_u32 s18, 0'); k(f's_cbranch_scc1 {lab}')
        k('s_mov_b32 s36, s17'); k('s_mov_b32 s37, 0')
        k.label(lp)
        k('v_readfirstlane_b32 s38, v60')
        k.nop(2)
        k('s_cmp_eq_u32 s38, 0'); k(f's_cbranch_scc1 {ok}')
        k('s_add_u32 s37, s37, 1'); k('s_cmp_ge_u32 s37, 40'); k(f's_cbranch_scc1 {ok}')
        k('s_add_u32 s36, s36, 1'); k('s_and_b32 s36, s36, 31')
        k('s_lshl_b32 s39, s36, 2'); k('s_add_u32 s39, s39, s21'); k(f's_add_u32 s39, s39, {CLAIM}')
        k('v_mov_b32 v60, 1')
        k('s_mov_b64 exec, 1')
        k.raw('  buffer_atomic_add v60, v61, s[4:7], s39 offen sc0'); k.t += 1
        k('s_mov_b64 exec, -1')
        k.raw('  s_waitcnt vmcnt(0)')
        k(f's_branch {lp}')
        k.label(ok)
        k('v_mov_b32 v62, s36'); k(f'v_mov_b32 v63, {MISC + 1024}')
        k.raw('  ds_write_b32 v63, v62'); k.t += 1
        k.label(lab)
        k.wait_all(vm=False, lg=True, force=True)
        k('s_barrier')
        k(f'v_mov_b32 v63, {MISC + 1024}')
        k('ds_read_b32 v62, v63')
        k('v_readfirstlane_b32 s36, v62')
        k('s_mov_b32 s31, 1')
        k.nop(2)
        k('s_cmp_eq_u32 s36, s17'); k(f's_cbranch_scc1 {skip}')
        k('s_mov_b32 s17, s36')
        k.raw('  s_waitcnt vmcnt(0)')
        k('s_barrier')
        k('s_branch ROLE')
        k.label(skip)
    k.settle()
    k.wait_all(vm=False, lg=True)
    k.vmq = []
    k.label('LAYER_LOOP')

    def poll(slot, att=False):
        lab = k.newlabel('POLL'); done = k.newlabel('POLLD')
        if att:
            k('v_lshlrev_b32 v12, 2, v4'); k('v_xor_b32 v14, 1, v5'); k('v_lshl_add_u32 v12, v14, 7, v12')
            k(f's_add_u32 s58, s21, {FLAGS + slot*FLAG_SLOT - 128}')
        else:
            k('v_lshlrev_b32 v12, 2, v4')
            k(f's_add_u32 s58, s21, {FLAGS + slot*FLAG_SLOT}')
        k('s_mov_b32 s59, 0')
        k.settle()
        k.label(lab)
        k.raw('  buffer_load_dword v14, v12, s[4:7], s58 offen sc1')
        k('s_add_u32 s59, s59, 1')
        k.raw('  s_waitcnt vmcnt(0)')
        k('v_and_b32 v14, v14, v13')
        k('v_cmp_ne_u32 vcc, v14, v13')
        k(f's_cmp_ge_u32 s59, {POLL_LIMIT}'); k(f's_cbranch_scc1 {done}')
        k.nop(1)
        k(f's_cbranch_vccnz {lab}')
        k.label(done)
        k.vmq = []

    def publish(phase, pol):
        k(f's_add_u32 s58, s21, {FLAGS + (phase + 1) * FLAG_SLOT}'); k('s_lshl_b32 s59, s17, 2'); k('s_add_u32 s58, s58, s59'); k('s_add_u32 s58, s58, s18')
        k('v_mov_b32 v14, 1'); k('v_mov_b32 v15, 0')
        k.wait_all(force=True)
        k('s_mov_b64 exec, 1')
        k(f'buffer_store_byte v14, v15, s[4:7], s58 offen {pol}')
        k('s_mov_b64 exec, -1')

    def mask_rows(mb128_sgpr):
        k(f's_lshl_b32 s36, {mb128_sgpr}, 1'); k('s_lshr_b32 s37, s18, 1'); k('s_add_u32 s36, s36, s37')
        k('s_and_b32 s37, s18, 1'); k('s_lshl_b32 s37, s37, 4'); k('s_lshl_b32 s37, 0x0101, s37')
        k('v_lshrrev_b32 v13, 3, v0'); k('v_cmp_eq_u32 vcc, s36, v13'); k('v_mov_b32 v14, s37'); k('v_cndmask_b32 v13, 0, v14, vcc')

    ACC = 128; AUGW = 112; AUGX = 126; WB = 160
    def xload32(so, s):
        pre, sg, imm = so.get(s * KB)
        return pre + [f'buffer_load_dwordx4 a[{4*s}:{4*s+3}], v1, s[4:7], {sg} offen{off(imm)} {LD}']

    def gemm32_post(so, DX):
        k('v_lshlrev_b32 v9, 16, v5'); k('v_lshl_add_u32 v9, v4, 3, v9')
        for s in range(2): emit(xload32(so, s))
        for p in range(4):
            if p: k(f's_add_u32 s43, s41, {p*16384}')
            k(f'buffer_load_dwordx2 v[{56+2*p}:{57+2*p}], v9, s[4:7], {"s43" if p else "s41"} offen {LD}')
        for s in range(2, DX): emit(xload32(so, s))

    def stats_math():
        return ['v_pk_add_f32 v[56:57], v[56:57], v[58:59]', 'v_pk_add_f32 v[60:61], v[60:61], v[62:63]',
            'v_pk_add_f32 v[56:57], v[56:57], v[60:61]', 'v_mov_b32 v58, v56', 'v_mov_b32 v59, v57',
            'v_permlane32_swap_b32 v56, v58', 'v_permlane32_swap_b32 v57, v59',
            'v_pk_add_f32 v[56:57], v[56:57], v[58:59]',
            f'v_mul_f32 v56, {f32(-1.0/640)}, v56', f'v_mul_f32 v57, {f32(1.0/640)}, v57',
            'v_fma_f32 v57, -v56, v56, v57', 'v_max_f32 v57, 0, v57', f'v_add_f32 v57, {f32(1e-5)}, v57',
            'v_rsq_f32 v64, v57', f'v_cvt_pk_bf16_f32 v{AUGX}, v56, v56', f'v_and_b32 v58, 0xffff0000, v{AUGX}',
            'v_sub_f32 v58, v56, v58', f'v_cvt_pk_bf16_f32 v{AUGX+1}, v58, 0']

    def gemm32_loop(NT, SLOT, NPRE, swap, sched, augbase, nm):
        def wreg(s, t): b = WB + ((s & 1) * NT + t) * 4; return f'a[{b}:{b+3}]'
        def rd(s, t):
            a, o = ldsaddr(SLOT[s >> 2] + ((s & 3) * NT + t) * KB)
            return f'ds_read_b128 {wreg(s,t)}, {a}{off(o)}'
        def mf(s, t):
            acc = f'v[{ACC+16*t}:{ACC+16*t+15}]'; x = f'a[{4*s}:{4*s+3}]'
            A, B = (x, wreg(s, t)) if swap else (wreg(s, t), x)
            return f'v_mfma_f32_32x32x16_bf16 {acc}, {A}, {B}, {acc if s else 0}'
        def sync(c):
            def f():
                k.wait_vm(('W', c)); k.wait_all(vm=False, lg=True); k('s_barrier'); fstamp(f'{nm}_c{c}')
            return f
        for t in range(NT): k(rd(0, t))
        for s in range(40):
            main = []
            if s + 1 < 40 and (s + 1) % 4 == 0 and ((s + 1) >> 2) >= NPRE:
                main.append(mf(s, 0)); main.append(sync((s + 1) >> 2))
                for t in range(NT):
                    main.append([rd(s + 1, t)] + ([mf(s, t + 1)] if t + 1 < NT else []))
                emit(main[:2]); emit(merge(main[2:], sched.get(s, [])))
            else:
                for t in range(NT):
                    main.append(([rd(s + 1, t)] if s + 1 < 40 else []) + [mf(s, t)])
                emit(merge(main, sched.get(s, [])))
        for t in range(NT):
            acc = f'v[{ACC+16*t}:{ACC+16*t+15}]'
            w = f'v[{AUGW+2*t}:{AUGW+2*t+1}]'; x = f'v[{AUGX}:{AUGX+1}]'
            A, B = (x, w) if swap else (w, x)
            k(f'v_mfma_f32_32x32x8_bf16 {acc}, {A}, {B}, {acc}')

    def aug_reads(NT, base):
        return [['v_lshlrev_b32 v10, 3, v0', f'v_add_u32 v10, {AUGL}, v10']] + [[f'ds_read_b64 v[{AUGW+2*t}:{AUGW+2*t+1}], v10{off((base+t)*512)}'] for t in range(NT)]

    fstamp('P_qkv')
    L_v = k.newlabel('QKV_V'); L_single = k.newlabel('QKV_S'); L_pubq = k.newlabel('QKV_P'); L_skipq = k.newlabel('QKV_K')
    k('s_cmp_ge_u32 s17, 30'); k(f's_cbranch_scc1 {L_skipq}')
    mask_rows('s28')
    k('s_lshl_b32 s44, s16, 3'); k('s_lshl_b32 s36, s28, 2'); k('s_add_u32 s44, s44, s36'); k('s_add_u32 s44, s44, s18')
    k(f's_mul_i32 s40, s44, {80*512}'); k('s_add_u32 s40, s40, s19')
    k('s_lshl_b32 s41, s44, 8'); k('s_add_u32 s41, s41, s19'); k(f's_add_u32 s41, s41, {SIN}')
    lab = k.newlabel('QNP')
    k.settle(); k('s_cmp_eq_u32 s20, 0'); k(f's_cbranch_scc1 {lab}')
    poll(0)
    k.label(lab)
    fstamp('P_qkv_go'); fstamp('qkv_go')
    DXQ = 8
    so = Soff('s40', 's42')
    gemm32_post(so, DXQ)
    lab = k.newlabel('QNB')
    k.wait_vm_idx(0)
    k.settle(); k('s_cmp_lg_u32 s20, 0'); k(f's_cbranch_scc1 {lab}')
    k('s_barrier')
    k.label(lab)
    def qsched(so, extra):
        sc = {s: [] for s in range(40)}
        for s in range(40 - DXQ): sc[s].append(xload32(so, s + DXQ))
        for c in range(5, 10):
            st = {5: 4, 6: 9, 7: 14, 8: 19, 9: 24}[c]
            for t in range(4): sc[st + t].append(dma_q(c, t))
        for s, g in extra.items(): sc[s] += g
        return sc
    k('s_cmp_ge_u32 s29, 10'); k(f's_cbranch_scc1 {L_v}')
    snap = k.snapshot(); cur = so.cur
    sm = stats_math()
    extra = {2 + i: [[x] for x in sm[3*i:3*i+3]] for i in range(6)}
    extra[30] = aug_reads(4, 0)
    pre = ['s_cmp_ge_u32 s29, 5', f's_cselect_b32 s46, {f32(1.0)}, {f32(DH**-0.5*math.log2(math.e))}',
           f's_mov_b32 s47, {HSQ}', f's_cselect_b32 s47, {HSK}, s47', f's_mov_b32 s48, {QP}', f's_cselect_b32 s48, {KP+768}, s48',
           's_cselect_b32 s49, 5, 0', 's_cselect_b32 s51, 0, 0x3f80', 's_sub_u32 s49, s29, s49', 's_add_u32 s48, s48, s19',
           f's_mul_i32 s50, s44, {2*768}', 's_add_u32 s48, s48, s50',
           'v_mul_f32 v64, s46, v64', 'v_mov_b32 v65, v64',
           'v_lshrrev_b32 v9, 4, v4', 'v_mul_u32_u24 v9, 768, v9', 'v_lshl_add_u32 v9, v6, 4, v9']
    extra[33] = [pre]
    gemm32_loop(4, QSLOT, 5, False, qsched(so, extra), 0, 'qkv')
    fstamp('qkv_loopend')
    k.settle()
    k('s_cmp_eq_u32 s49, 4'); k(f's_cbranch_scc1 {L_single}')
    snap2 = k.snapshot()
    k('v_lshl_add_u32 v9, v5, 8, v9')
    k('s_lshl_b32 s50, s49, 3'); k('s_mul_i32 s50, s50, s47'); k('s_add_u32 s48, s48, s50')
    for p in range(8):
        a = ACC + 8 * p; d = 16 + 4 * (p & 3)
        for j in range(4): k(f'v_pk_mul_f32 v[{a+2*j}:{a+2*j+1}], v[{a+2*j}:{a+2*j+1}], v[64:65]')
        for j in range(4): k(f'v_cvt_pk_bf16_f32 v{d+j}, v{a+2*j}, v{a+2*j+1}')
        k(f'buffer_store_dwordx4 v[{d}:{d+3}], v9, s[4:7], s48 offen sc1')
        if p < 7: k('s_add_u32 s48, s48, s47')
    k.settle(); k(f's_branch {L_pubq}')
    k.label(L_single); k.restore(snap2)
    k('v_mul_lo_u32 v10, v5, s47'); k('v_add_u32 v9, v9, v10')
    k('s_add_u32 s48, s48, 512'); k('s_lshl_b32 s47, s47, 1')
    for q in range(4): k(f'v_mov_b32 v{16+4*q+2}, s51'); k(f'v_mov_b32 v{16+4*q+3}, 0')
    for q in range(16):
        a = ACC + 4 * q; d = 16 + 4 * (q & 3)
        for j in range(2): k(f'v_pk_mul_f32 v[{a+2*j}:{a+2*j+1}], v[{a+2*j}:{a+2*j+1}], v[64:65]')
        for j in range(2): k(f'v_cvt_pk_bf16_f32 v{d+j}, v{a+2*j}, v{a+2*j+1}')
        k(f'buffer_store_dwordx4 v[{d}:{d+3}], v9, s[4:7], s48 offen sc1')
        if q < 15: k('s_add_u32 s48, s48, s47')
    k.settle(); k(f's_branch {L_pubq}')
    k.label(L_v); k.restore(snap); so.cur = cur
    extra = {2 + i: [[x] for x in sm[3*i:3*i+3]] for i in range(6)}
    extra[10] = [['s_lshl_b32 s46, s18, 8', f's_add_u32 s46, s46, {MISC}', 'v_lshl_add_u32 v9, v0, 2, s46', 'ds_write_b32 v9, v64', 'v_lshl_add_u32 v9, v5, 4, s46']]
    extra[12] = [[f'ds_read_b128 v[{68+4*u}:{71+4*u}], v9{off(32*u)}'] for u in range(4)]
    extra[30] = aug_reads(4, 0)
    pre = ['s_sub_u32 s49, s29, 10', f's_mul_i32 s48, s44, {VBLK}', 's_add_u32 s48, s48, s19', f's_add_u32 s48, s48, {VP+VBLK}', f's_mov_b32 s47, {HSV}',
           'v_lshrrev_b32 v9, 4, v4', 'v_mul_lo_u32 v9, v9, s47', 'v_lshl_add_u32 v9, v5, 8, v9', 'v_lshl_add_u32 v9, v6, 4, v9',
           'v_lshrrev_b32 v11, 2, v4', 'v_mul_lo_u32 v11, v11, s47', 'v_lshl_add_u32 v11, v5, 6, v11', 'v_and_b32 v12, 3, v4', 'v_lshl_add_u32 v11, v12, 4, v11', 'v_add_u32 v11, 1024, v11',
           's_cmp_eq_u32 s49, 4', 's_cselect_b64 vcc, -1, 0', f's_mov_b32 s50, {2*HSV}', f's_cselect_b32 s50, {8*HSV}, s50',
           's_mov_b32 s51, 512', 's_cselect_b32 s51, 128, s51', 's_cselect_b32 s52, 0, s49',
           f's_mul_i32 s52, s52, {8*HSV}', 's_add_u32 s48, s48, s52', 'v_cndmask_b32 v9, v9, v11, vcc', 'v_add_u32 v11, s51, v9']
    extra[33] = [pre]
    gemm32_loop(4, QSLOT, 5, True, qsched(so, extra), 0, 'xv')
    for t in range(4):
        for r in range(0, 16, 2):
            a = ACC + 16 * t + r
            k(f'v_pk_mul_f32 v[{a}:{a+1}], v[{a}:{a+1}], v[{68+r}:{69+r}]')
        for pc in range(2):
            d = 16 + 4 * ((2 * t + pc) & 3); a = ACC + 16 * t + 4 * pc
            k(f'v_cvt_pk_bf16_f32 v{d}, v{a}, v{a+1}'); k(f'v_cvt_pk_bf16_f32 v{d+1}, v{a+2}, v{a+3}')
            k(f'v_cvt_pk_bf16_f32 v{d+2}, v{a+8}, v{a+9}'); k(f'v_cvt_pk_bf16_f32 v{d+3}, v{a+10}, v{a+11}')
            k(f'buffer_store_dwordx4 v[{d}:{d+3}], v{9+2*pc}, s[4:7], s48 offen sc1')
        if t < 3: k('s_add_u32 s48, s48, s50')
    k.settle()
    k.label(L_pubq)
    fstamp('qkv_epi')
    k.label(L_skipq)
    k('s_lshl_b32 s58, s20, 15'); k('s_lshl_b32 s59, s16, 12'); k('s_add_u32 s58, s58, s59'); k(f's_add_u32 s58, s58, {QFLAG}')
    k('s_lshl_b32 s59, s17, 7'); k('s_add_u32 s59, s59, s58')
    k('v_mov_b32 v14, 1'); k('v_mov_b32 v15, 0')
    k.wait_all(force=True)
    fstamp('qkv_stored')
    k('s_barrier')
    lab = k.newlabel('QPUB')
    k('s_cmp_lg_u32 s18, 1'); k(f's_cbranch_scc1 {lab}')
    k('s_mov_b64 exec, 1')
    k.raw('  buffer_store_dword v14, v15, s[4:7], s59 offen sc1'); k.t += 1
    k('s_mov_b64 exec, -1')
    k.label(lab)
    fstamp('P_att')

    KF = 0; V0 = 80; V1 = 120; QF = 160
    SB = [64, 132]; PB = 200; OA = 236; MF = 244; MD = 248
    RES_WO = 52
    for r in range(4):
        k(f'v_lshl_add_u32 v9, v7, 2, {r}')
        k('v_cmp_gt_u32 vcc, v9, v6')
        k(f'v_mov_b32 v10, 0xf149f2ca')
        k(f'v_cndmask_b32 v{MF+r}, v10, 0, vcc')
        k(f'v_cndmask_b32 v{MD+r}, 0, v10, vcc')
    k('v_and_b32 v12, 7, v6'); k('v_cmp_eq_u32 vcc, 4, v12'); k('v_mov_b32 v10, 0x3f803f80'); k('v_cndmask_b32 v10, 0, v10, vcc')
    for r in range(40): k(f'v_accvgpr_write_b32 a{V1+r}, v10')
    k('v_cmp_gt_u32 vcc, 48, v0'); k('v_cndmask_b32 v9, v8, v1, vcc')
    k('v_lshlrev_b32 v10, 6, v7'); k('v_lshl_add_u32 v10, v6, 4, v10')
    k('s_mov_b32 s54, 0x000f000f'); k('s_mov_b32 s55, 0x000f000f')
    k('s_lshl_b32 s36, s16, 4'); k('s_lshl_b32 s37, s18, 2'); k('s_add_u32 s36, s36, s37')
    k(f's_mul_i32 s37, s17, {HSQ}'); k('s_add_u32 s37, s37, s19'); k(f's_add_u32 s37, s37, {QP}')
    k('s_mul_i32 s38, s36, 768'); k('s_add_u32 s37, s37, s38')
    k(f's_mul_i32 s39, s17, {HSK}'); k('s_add_u32 s39, s39, s19'); k(f's_add_u32 s39, s39, {KP}')
    k(f's_sub_i32 s40, s38, {15*768}')
    k(f's_mul_i32 s41, s17, {HSV}'); k('s_add_u32 s41, s41, s19'); k(f's_add_u32 s41, s41, {VP}')
    k(f's_mul_i32 s42, s36, {VBLK//2}'); k(f's_sub_i32 s42, s42, {7*VBLK}')
    k('v_lshrrev_b32 v11, 1, v7'); k('v_lshlrev_b32 v11, 9, v11'); k('v_and_b32 v12, 1, v7'); k('v_lshl_add_u32 v11, v12, 3, v11'); k('v_lshl_add_u32 v11, v6, 4, v11')
    k('v_lshlrev_b32 v15, 4, v6'); k('v_cmp_gt_u32 vcc, 16, v0'); k('v_cndmask_b32 v31, v8, v15, vcc')
    k('s_lshr_b32 s44, s36, 1'); k(f's_mul_i32 s44, s44, {80*512}'); k('s_add_u32 s44, s44, s19'); k(f's_add_u32 s44, s44, {OB}')
    k('s_lshr_b32 s45, s17, 1'); k('s_lshl_b32 s45, s45, 9'); k('s_and_b32 s46, s17, 1'); k('s_lshl_b32 s46, s46, 3'); k('s_add_u32 s45, s45, s46')
    k(f's_add_u32 s45, s45, {64*512}'); k('s_add_u32 s45, s45, s44')
    k('s_lshl_b32 s46, s17, 10'); k('s_add_u32 s44, s44, s46')
    k('v_mul_u32_u24 v13, 205, v4'); k('v_lshrrev_b32 v13, 10, v13'); k('v_mul_u32_u24 v13, 5, v13'); k('v_sub_u32 v13, v4, v13')
    k('s_lshr_b32 s46, s17, 3')
    k('v_cmp_eq_u32 s[48:49], s46, v13'); k('v_cmp_eq_u32 s[50:51], 4, v13'); k.nop(1); k('s_or_b64 s[48:49], s[48:49], s[50:51]')
    k('s_mov_b32 s50, 0x3fffffff'); k(f's_mov_b32 s51, {(0x3ff << 5) | (0x3ff << 20)}')
    k('s_cmp_eq_u32 s16, 0'); k('s_cselect_b32 s51, 0, s51')
    k('s_and_b64 vcc, s[48:49], s[50:51]')
    k('v_xor_b32 v14, 1, v5'); k('v_lshlrev_b32 v14, 12, v14'); k('v_lshl_add_u32 v12, v4, 7, v14')
    k('v_cndmask_b32 v12, v8, v12, vcc'); k('v_cndmask_b32 v13, 0, 1, vcc')
    k('s_sub_u32 s58, s58, 4096')
    lab = k.newlabel('APOLL'); done = k.newlabel('APOLLD')
    k('s_mov_b32 s59, 0')
    k.settle()
    k('s_cmp_lg_u32 s18, 0'); k(f's_cbranch_scc1 {done}')
    k.label(lab)
    k.raw('  buffer_load_dword v14, v12, s[4:7], s58 offen sc1')
    k('s_add_u32 s59, s59, 1')
    k.raw('  s_waitcnt vmcnt(0)')
    k('v_cmp_ne_u32 vcc, v14, v13')
    k(f's_cmp_ge_u32 s59, {POLL_LIMIT}'); k(f's_cbranch_scc1 {done}')
    k.nop(1)
    k(f's_cbranch_vccnz {lab}')
    k.label(done)
    k('s_barrier')
    fstamp('P_att_go'); fstamp('att_go')
    def qload(a): return [f'buffer_load_dwordx4 a[{QF+4*a}:{QF+4*a+3}], v9, s[4:7], s37 offen{off(768*a)} {LDX}']
    def kload(n): return [f's_add_i32 s43, s40, {768*n}', 's_max_i32 s43, s43, 0', 's_add_u32 s43, s43, s39', f'buffer_load_dwordx4 a[{KF+4*n}:{KF+4*n+3}], v9, s[4:7], s43 offen {LDX}']
    def vload(b): return [f's_add_i32 s43, s42, {VBLK*b}', 's_max_i32 s43, s43, 0', 's_add_u32 s43, s43, s41',
                          f'buffer_load_dwordx4 a[{V0+4*b}:{V0+4*b+3}], v1, s[4:7], s43 offen {LDX}',
                          's_mov_b64 exec, s[54:55]', f'buffer_load_dwordx4 a[{V1+4*b}:{V1+4*b+3}], v10, s[4:7], s43 offen offset:1024 {LDX}', 's_mov_b64 exec, -1']
    def qk(a):
        S = SB[a & 1]; out = []
        for n in range(17):
            c = f'v[{MF}:{MF+3}]' if n == 0 else (f'v[{MD}:{MD+3}]' if n == 16 else '0')
            out.append(f'v_mfma_f32_16x16x32_bf16 v[{S+4*n}:{S+4*n+3}], a[{KF+4*(a+n)}:{KF+4*(a+n)+3}], a[{QF+4*a}:{QF+4*a+3}], {c}')
        return out
    def smax(a):
        S = SB[a & 1]; o = []
        o.append(f'v_max3_f32 v16, v{S}, v{S+1}, v{S+2}'); o.append(f'v_max3_f32 v17, v{S+3}, v{S+4}, v{S+5}')
        r = 6; c = 0
        while r < 68:
            o.append(f'v_max3_f32 v{16+c}, v{16+c}, v{S+r}, v{S+r+1}'); r += 2; c ^= 1
        o += ['v_max_f32 v16, v16, v17', 'v_mov_b32 v17, v16', 'v_permlane16_swap_b32 v16, v17', 'v_max_f32 v16, v16, v17',
              'v_mov_b32 v17, v16', 'v_permlane32_swap_b32 v16, v17', 'v_max_f32 v16, v16, v17', 'v_mov_b32 v17, v16']
        return o
    def sexp(a):
        S = SB[a & 1]; o = []
        def cv(n):
            s = S + 4 * n; f = a + n; i = (f >> 1) - (a >> 1); e = f & 1; p = PB + 4 * i + 2 * e
            return [f'v_cvt_pk_bf16_f32 v{p}, v{s}, v{s+1}', f'v_cvt_pk_bf16_f32 v{p+1}, v{s+2}, v{s+3}']
        for n in range(17):
            s = S + 4 * n
            o.append(f'v_pk_add_f32 v[{s}:{s+1}], v[{s}:{s+1}], v[16:17] neg_lo:[0,1] neg_hi:[0,1]')
            o.append(f'v_pk_add_f32 v[{s+2}:{s+3}], v[{s+2}:{s+3}], v[16:17] neg_lo:[0,1] neg_hi:[0,1]')
            if n: o += cv(n - 1)
            for j in range(4): o.append(f'v_exp_f32 v{s+j}, v{s+j}')
        z = PB + 34 if (a & 1) == 0 else PB
        o += [f'v_mov_b32 v{z}, 0', f'v_mov_b32 v{z+1}, 0'] + cv(16)
        return o
    def pv(a):
        o = []; b0 = a >> 1
        for i in range(9):
            p = f'v[{PB+4*i}:{PB+4*i+3}]'
            o.append(f'v_mfma_f32_16x16x32_bf16 v[{OA}:{OA+3}], a[{V0+4*(b0+i)}:{V0+4*(b0+i)+3}], {p}, ' + (f'v[{OA}:{OA+3}]' if i else '0'))
            o.append(f'v_mfma_f32_16x16x32_bf16 v[{OA+4}:{OA+7}], a[{V1+4*(b0+i)}:{V1+4*(b0+i)+3}], {p}, ' + (f'v[{OA+4}:{OA+7}]' if i else '0'))
        return o
    def outo(a):
        o = [f'v_mov_b32 v20, v{OA+4}', f'v_permlane16_swap_b32 v{OA+4}, v20', 'v_rcp_f32 v20, v20', 'v_mov_b32 v21, v20']
        for j in range(4): o.append(f'v_pk_mul_f32 v[{OA+2*j}:{OA+2*j+1}], v[{OA+2*j}:{OA+2*j+1}], v[20:21]')
        d = 22 + 4 * (a & 1)
        for j in range(4): o.append(f'v_cvt_pk_bf16_f32 v{d+j}, v{OA+2*j}, v{OA+2*j+1}')
        if a == 2: o += [f's_add_u32 s44, s44, {80*512}', f's_add_u32 s45, s45, {80*512}']
        o.append(f'buffer_store_dwordx2 v[{d}:{d+1}], v11, s[4:7], s44 offen{off(256*(a&1))} {LOC}')
        o.append(f'buffer_store_dwordx2 v[{d+2}:{d+3}], v31, s[4:7], s45 offen{off(256*(a&1))} {LOC}')
        return o
    def g16_addr():
        return ['s_lshr_b32 s60, s17, 3', 's_lshl_b32 s61, s16, 3', 's_lshl_b32 s60, s60, 1', 's_add_u32 s61, s61, s60',
                's_lshr_b32 s62, s18, 1', 's_add_u32 s62, s62, s61',
                f's_mul_i32 s63, s62, {80*512}', 's_and_b32 s60, s18, 1', 's_lshl_b32 s60, s60, 8', 's_add_u32 s63, s63, s60',
                's_and_b32 s60, s17, 7', f's_mul_i32 s60, s60, {10*512}', 's_add_u32 s63, s63, s60',
                'v_lshlrev_b32 v62, 9, v7', 'v_lshl_add_u32 v62, v6, 4, v62',
                'v_lshrrev_b32 v63, 1, v7', 'v_lshlrev_b32 v63, 9, v63', 'v_lshl_add_u32 v63, v6, 4, v63', 'v_and_b32 v15, 1, v7', 'v_lshl_add_u32 v63, v15, 3, v63',
                'v_add_u32 v63, 4096, v63']
    def resload(R, buf, va, vb):
        return [['s_add_u32 s33, s63, s19', f's_add_u32 s33, s33, {buf}', f'buffer_load_dwordx4 v[{R}:{R+3}], {va}, s[4:7], s33 offen {LD}',
                 f'buffer_load_dwordx4 v[{R+4}:{R+7}], {va}, s[4:7], s33 offen offset:2048 {LD}', f'buffer_load_dwordx2 v[{R+8}:{R+9}], {vb}, s[4:7], s33 offen {LD}']]
    def touch(vo, so): return (f'buffer_load_dword v254, {vo}, s[4:7], {so} offen sc1', 'nodest')
    def touch_x(buf, stat):
        return [['v_lshrrev_b32 v253, 1, v0', 'v_lshlrev_b32 v253, 9, v253', 'v_and_b32 v252, 1, v0', 'v_lshl_add_u32 v253, v252, 7, v253',
                 'v_cmp_gt_u32 vcc, 20, v0', 'v_cndmask_b32 v253, v8, v253, vcc', 's_add_u32 s33, s63, s19', f's_add_u32 s33, s33, {buf}', touch('v253', 's33'),
                 's_lshl_b32 s33, s62, 8', 's_and_b32 s32, s18, 1', 's_lshl_b32 s32, s32, 7', 's_add_u32 s33, s33, s32',
                 's_and_b32 s32, s17, 7', 's_lshl_b32 s32, s32, 14', 's_add_u32 s33, s33, s32', 's_add_u32 s33, s33, s19', f's_add_u32 s33, s33, {stat}',
                 'v_mov_b32 v252, 0', touch('v252', 's33')]]
    touch_o = [['v_lshrrev_b32 v253, 3, v0', f'v_mul_u32_u24 v253, {80*512}, v253', 'v_and_b32 v252, 7, v0', 'v_lshl_add_u32 v253, v252, 7, v253',
                'v_cmp_gt_u32 vcc, 16, v0', 'v_cndmask_b32 v253, v8, v253, vcc', touch('v253', 's44'), touch('v253', 's45')]]
    emit(qload(0))
    for n in range(8): emit(kload(n))
    q0 = qk(0)
    for n in range(17):
        if n + 8 < 17: emit(kload(n + 8))
        elif n + 8 < 20: emit(qload(n + 8 - 16)); emit(kload(n + 8))
        k(q0[n])
    side = [wload('s24', f, wo_wreg(f)) for f in range(25)]
    sideg = [dma_g(c, t) for c in range(3) for t in range(7)]
    sides = {0: [vload(b) for b in range(10)] + (touch_o if opt.local else []), 1: [g16_addr()] + (touch_x(XMID, SMID) if opt.local else []) + resload(RES_WO, XIN, 'v62', 'v63') + side[:16], 2: side[16:] + sideg[:8], 3: sideg[8:]}
    for a in range(4):
        mx = smax(a); ex = sexp(a)
        if a > 0:
            emit(merge(mx, [[x] for x in pv(a - 1)]))
            ex = ex[:12] + outo(a - 1) + ex[12:]
        else:
            emit(mx)
        nxt = [[x] for x in qk(a + 1)] if a < 3 else []
        emit(merge(merge(ex, nxt), sides[a]))
        fstamp(f'att_t{a}')
    emit(pv(3)); emit(outo(3))
    fstamp('att_end')
    publish(1, LOC)
    fstamp('att_stored')
    fstamp('P_wo')

    A16 = 128; RD = 64; UNP = 148; PK = 168
    def gemm16(phase, NSTEP, KC, xbuf, outbuf, statbuf, flagslot, wreg, xreg, RES, startstep, tail_side, nm):
        down = phase == 4
        for mt in range(4):
            k(f's_add_u32 s36, s18, {mt}'); k('s_and_b32 s36, s36, 3')
            k('s_lshr_b32 s37, s36, 1'); k('s_add_u32 s37, s37, s61'); k(f's_mul_i32 s37, s37, {KC*512}')
            k('s_and_b32 s36, s36, 1'); k('s_lshl_b32 s36, s36, 8'); k('s_add_u32 s37, s37, s36')
            k(f's_lshl_b32 s36, {startstep}, 11'); k('s_add_u32 s37, s37, s36')
            k(f's_add_u32 s37, s37, {xbuf}'); k(f's_add_u32 s{40+mt}, s37, s19')
        k('v_mov_b32 v9, v62'); k('v_mov_b32 v10, v63')
        k('s_lshr_b32 s38, s17, 3')
        if down:
            k('s_cmp_ge_u32 s18, 2'); k('s_cselect_b64 vcc, -1, 0')
            k('v_cndmask_b32 v11, v9, v8, vcc'); k('v_cndmask_b32 v15, v1, v8, vcc')
            k('s_lshl_b32 s36, s18, 2'); k('s_cmp_eq_u32 s18, 3'); k('s_cselect_b32 s36, 11, s36'); k('s_cselect_b32 s37, 5, 4')
            k('s_lshr_b32 s39, s38, 1'); k('s_lshl_b32 s39, s39, 4'); k('s_add_u32 s36, s36, s39')
            k('s_and_b32 s39, s38, 1'); k('s_lshl_b32 s39, s39, 4'); k('s_lshl_b32 s39, 0x0101, s39')
        else:
            k('s_mul_i32 s36, s18, 10'); k('s_cmp_eq_u32 s18, 3'); k('s_cselect_b32 s36, 0, s36'); k('s_cselect_b32 s37, 32, 10')
            k('s_lshl_b32 s39, s38, 3'); k('s_lshl_b32 s39, 1, s39')
        k('v_subrev_u32 v13, s36, v0'); k('v_cmp_gt_u32 vcc, s37, v13'); k('v_mov_b32 v14, s39'); k('v_cndmask_b32 v13, 0, v14, vcc')
        for mt in range(1, 4):
            k(f's_add_u32 s36, s18, {mt}'); k('s_and_b32 s36, s36, 3'); k('s_mul_i32 s36, s36, 15360'); k(f's_add_u32 s36, s36, {(mt-1)*5120}')
            k(f'v_add_u32 v{220+mt}, s36, v1')
        k('s_mul_i32 s36, s18, 15360'); k('v_add_u32 v220, s36, v1')
        if down: k('v_mov_b32 v224, v15')
        poll(flagslot)
        fstamp(f'P_{nm}_go'); fstamp(f'{nm}_go')
        sx = [Soff(f's{40+mt}', f's{44+mt}') for mt in range(4)]
        def xload(s, mt):
            pre, sg, imm = sx[mt].get(s * 2048)
            vo = 'v11' if (down and s == NSTEP - 1) else 'v9'
            return pre + [f'buffer_load_dwordx4 {xreg(s, mt)}, {vo}, s[4:7], {sg} offen{off(imm)} {LD}']
        q = []
        for s in range(NSTEP):
            if down and s >= 10:
                for nt in range(5): q.append(('w', s, nt))
            for mt in range(4): q.append(('x', s, mt))
        def grp(e):
            if e[0] == 'x': return xload(e[1], e[2])
            f = e[1] * 5 + e[2]
            return wload('s25', f, wreg(f), 'v224' if e[1] == NSTEP - 1 else 'v1')
        for e in q[:8]: emit(grp(e))
        q = q[8:]
        per = 6 if down else 6
        for s in range(NSTEP):
            main = []
            for mt in range(4):
                for nt in range(5):
                    acc = f'v[{A16+4*(mt*5+nt)}:{A16+4*(mt*5+nt)+3}]'
                    main.append(f'v_mfma_f32_16x16x32_bf16 {acc}, {wreg(s*5+nt)}, {xreg(s, mt)}, {acc if s else 0}')
            take = []
            while q and len(take) < per and q[0][1] - 10 < s:
                take.append(q.pop(0))
            sd = [grp(e) for e in take]
            if down and s == NSTEP - 2: sd += resload(RES, XMID, 'v9', 'v10')
            emit(merge(main, sd))
        assert not q
        fstamp(f'{nm}_loopend')
        wr = []
        for mt in range(1, 4):
            for nt in range(5):
                a = A16 + 4 * (mt * 5 + nt)
                wr.append(f'ds_write_b128 v{220+mt}, v[{a}:{a+3}]{off(nt*KB)}')
        emit(merge(wr, tail_side[:8]))
        k.wait_all(vm=False, lg=True)
        k('s_barrier')
        fstamp(f'{nm}_red')
        ep = []
        for j in range(15): ep.append(f'ds_read_b128 v[{RD+4*j}:{RD+4*j+3}], v220{off(j*KB)}')
        for j in range(10): ep += [f'v_lshlrev_b32 v{UNP+2*j}, 16, v{RES+j}', f'v_and_b32 v{UNP+1+2*j}, 0xffff0000, v{RES+j}']
        for j in range(10):
            a = A16 + 2 * j
            ep.append(f'v_pk_add_f32 v[{a}:{a+1}], v[{a}:{a+1}], v[{UNP+2*j}:{UNP+1+2*j}]')
        ep += ['s_add_u32 s36, s63, s19', f's_add_u32 s36, s36, {outbuf}']
        if down:
            ep += ['s_lshl_b32 s37, s62, 5', 's_and_b32 s38, s18, 1', 's_lshl_b32 s38, s38, 4', 's_add_u32 s37, s37, s38',
                   's_mul_i32 s37, s37, 1280', 's_and_b32 s38, s17, 7', 's_mul_i32 s38, s38, 160', 's_add_u32 s37, s37, s38',
                   'v_mul_u32_u24 v180, 1280, v6', 'v_lshl_add_u32 v181, v7, 3, v180', 'v_lshl_add_u32 v180, v7, 4, v180',
                   'v_add_u32 v182, 64, v180', 'v_add_u32 v181, 128, v181', 'v_add_u32 v183, 2048, v9',
                   ['s_cmp_eq_u32 s20, 1', 's_cselect_b64 vcc, -1, 0', 's_cselect_b32 s36, s37, s36'],
                   'v_cndmask_b32 v180, v9, v180, vcc', 'v_cndmask_b32 v182, v183, v182, vcc', 'v_cndmask_b32 v181, v10, v181, vcc']
        for src in range(3):
            for j in range(10):
                a = A16 + 2 * j; b = RD + 20 * src + 2 * j
                ep.append(f'v_pk_add_f32 v[{a}:{a+1}], v[{a}:{a+1}], v[{b}:{b+1}]')
        for j in range(10): ep.append(f'v_cvt_pk_bf16_f32 v{PK+j}, v{A16+2*j}, v{A16+2*j+1}')
        emit(merge(ep, tail_side[8:]))
        if down:
            k(f'buffer_store_dwordx4 v[{PK}:{PK+3}], v180, s[8:11], s36 offen {LOC}')
            k(f'buffer_store_dwordx4 v[{PK+4}:{PK+7}], v182, s[8:11], s36 offen {LOC}')
            k(f'buffer_store_dwordx2 v[{PK+8}:{PK+9}], v181, s[8:11], s36 offen {LOC}')
        else:
            k(f'buffer_store_dwordx4 v[{PK}:{PK+3}], v9, s[4:7], s36 offen {LOC}')
            k(f'buffer_store_dwordx4 v[{PK+4}:{PK+7}], v9, s[4:7], s36 offen offset:2048 {LOC}')
            k(f'buffer_store_dwordx2 v[{PK+8}:{PK+9}], v10, s[4:7], s36 offen {LOC}')
        S = 184
        k('s_mov_b32 s37, 0x3f803f80')
        for r in range(4): k(f'v_mov_b32 v{S+r}, 0')
        for j in range(10):
            k(f'v_dot2_f32_bf16 v{S+2*(j&1)}, v{PK+j}, s37, v{S+2*(j&1)}')
            k(f'v_dot2_f32_bf16 v{S+1+2*(j&1)}, v{PK+j}, v{PK+j}, v{S+1+2*(j&1)}')
        k(f'v_lshlrev_b32 v{S+4}, 3, v6'); k('v_cmp_gt_u32 vcc, 16, v0'); k(f'v_cndmask_b32 v{S+4}, v8, v{S+4}, vcc')
        k(f'v_pk_add_f32 v[{S}:{S+1}], v[{S}:{S+1}], v[{S+2}:{S+3}]')
        k(f'v_mov_b32 v{S+2}, v{S}'); k(f'v_mov_b32 v{S+3}, v{S+1}')
        k('s_lshl_b32 s37, s62, 8'); k('s_and_b32 s38, s18, 1'); k('s_lshl_b32 s38, s38, 7'); k('s_add_u32 s37, s37, s38')
        k(f'v_permlane16_swap_b32 v{S}, v{S+2}'); k(f'v_permlane16_swap_b32 v{S+1}, v{S+3}')
        k(f'v_pk_add_f32 v[{S}:{S+1}], v[{S}:{S+1}], v[{S+2}:{S+3}]')
        k(f'v_mov_b32 v{S+2}, v{S}'); k(f'v_mov_b32 v{S+3}, v{S+1}')
        k('s_and_b32 s38, s17, 7'); k('s_lshl_b32 s38, s38, 14'); k('s_add_u32 s37, s37, s38'); k('s_add_u32 s37, s37, s19'); k(f's_add_u32 s37, s37, {statbuf}')
        k(f'v_permlane32_swap_b32 v{S}, v{S+2}'); k(f'v_permlane32_swap_b32 v{S+1}, v{S+3}')
        k(f'v_pk_add_f32 v[{S}:{S+1}], v[{S}:{S+1}], v[{S+2}:{S+3}]')
        k(f'buffer_store_dwordx2 v[{S}:{S+1}], v{S+4}, s[4:7], s37 offen {LOC}')
        fstamp(f'{nm}_epi')
        publish(phase, LOC)
        fstamp(f'{nm}_stored')
        k('s_barrier')

    k('s_mul_i32 s35, s18, 5')
    gemm16(2, 5, 80, OB, XMID, SMID, 2, wo_wreg, lambda s, mt: f'a[{16*s+4*mt}:{16*s+4*mt+3}]', RES_WO, 's35', [], 'wo')
    fstamp('P_gu')

    k('s_lshr_b32 s45, s17, 4')
    mask_rows('s45')
    k('s_lshl_b32 s44, s16, 3'); k('s_lshl_b32 s36, s45, 2'); k('s_add_u32 s44, s44, s36'); k('s_add_u32 s44, s44, s18')
    k(f's_mul_i32 s40, s44, {80*512}'); k('s_add_u32 s40, s40, s19'); k(f's_add_u32 s40, s40, {XMID}')
    k('s_lshl_b32 s41, s44, 8'); k('s_add_u32 s41, s41, s19'); k(f's_add_u32 s41, s41, {SMID}')
    k(f's_mul_i32 s46, s44, {216*512}'); k('s_lshl_b32 s47, s30, 10'); k('s_add_u32 s46, s46, s47'); k('s_add_u32 s46, s46, s19'); k(f's_add_u32 s46, s46, {HB}')
    k('s_add_u32 s47, s46, 4096')
    poll(3)
    fstamp('P_gu_go'); fstamp('gu_go')
    DXG = 6
    so = Soff('s40', 's42')
    gemm32_post(so, DXG)
    sc = {s: [] for s in range(40)}
    for s in range(40 - DXG): sc[s].append(xload32(so, s + DXG))
    def place(groups, start, per):
        s = start
        for i, g in enumerate(groups):
            sc[start + i // per].append(g)
    place([dma_g(3, t) for t in range(7)], 0, 2)
    place([dma_g(4, t) for t in range(7)], 4, 2)
    place([dma_g(c, t) for c in range(5, 10) for t in range(7)], 12, 2)
    dw = [wload('s25', f, dn_wreg(f)) for f in range(50)]
    place(dw[:8], 8, 2)
    place(dw[8:16], 30, 2)
    place(dw[16:34], 34, 3)
    sm = stats_math()
    c = math.sqrt(2 / math.pi); k1 = -2 * c * math.log2(math.e); k2 = k1 * 0.044715
    sm += [f'v_mul_f32 v66, {f32(k1)}, v64', 'v_mul_f32 v68, v64, v64', 'v_mul_f32 v68, v68, v64', f'v_mul_f32 v68, {f32(k2)}, v68',
           'v_mov_b32 v67, v66', 'v_mov_b32 v69, v68', 'v_mov_b32 v70, v57', 'v_mov_b32 v71, v57']
    for i, x in enumerate(sm): sc[2 + i // 4].append([x])
    sc[31] += aug_reads(7, 4)
    if opt.local:
        sc[34] = [['v_lshlrev_b32 v253, 7, v0', 'v_cmp_gt_u32 vcc, 56, v0', 'v_cndmask_b32 v253, v8, v253, vcc', touch('v253', 's46')]] + touch_x(LSTRIDE + XIN, LSTRIDE + SIN) + sc[34]
    gemm32_loop(7, GSLOT, 3, False, sc, 4, 'gu')
    fstamp('gu_loopend')
    ep = []
    for t in range(7):
        a = ACC + 16 * t; tm = 72 + 8 * (t & 1); d = 16 + 4 * (t & 3)
        P = range(4)
        for j in P: ep.append(f'v_pk_mul_f32 v[{tm+2*j}:{tm+2*j+1}], v[{a+2*j}:{a+2*j+1}], v[{a+2*j}:{a+2*j+1}]')
        for j in P: ep.append(f'v_pk_fma_f32 v[{tm+2*j}:{tm+2*j+1}], v[{tm+2*j}:{tm+2*j+1}], v[68:69], v[66:67]')
        for j in P: ep.append(f'v_pk_mul_f32 v[{tm+2*j}:{tm+2*j+1}], v[{tm+2*j}:{tm+2*j+1}], v[{a+2*j}:{a+2*j+1}]')
        for j in range(8): ep.append(f'v_exp_f32 v{tm+j}, v{tm+j}')
        for j in P: ep.append(f'v_pk_mul_f32 v[{a+2*j}:{a+2*j+1}], v[{a+2*j}:{a+2*j+1}], v[{a+8+2*j}:{a+8+2*j+1}]')
        for j in P: ep.append(f'v_pk_fma_f32 v[{tm+2*j}:{tm+2*j+1}], v[{tm+2*j}:{tm+2*j+1}], v[70:71], v[70:71]')
        for j in range(8): ep.append(f'v_rcp_f32 v{tm+j}, v{tm+j}')
        for j in P: ep.append(f'v_pk_mul_f32 v[{a+2*j}:{a+2*j+1}], v[{a+2*j}:{a+2*j+1}], v[{tm+2*j}:{tm+2*j+1}]')
        for j in P: ep.append(f'v_cvt_pk_bf16_f32 v{d+j}, v{a+2*j}, v{a+2*j+1}')
        ep.append(f'buffer_store_dwordx4 v[{d}:{d+3}], v1, s[4:7], s{46+(t>>2)} offen{off((t&3)*KB)} {LOC}')
    n5 = len(ep) * 5 // 7
    emit(merge(ep[:n5], dw[34:])); emit(ep[n5:])
    fstamp('gu_epi')
    publish(3, LOC)
    fstamp('gu_stored')
    k('s_barrier')
    fstamp('P_dn')

    k('s_cmp_eq_u32 s20, 1')
    k('s_cselect_b32 s8, s14, s12'); k('s_cselect_b32 s9, s15, s13'); k(f's_cselect_b32 s10, {T*D*2}, s6')
    emit(g16_addr())
    def dn_xreg(s, mt):
        i = (s % 10) * 4 + mt
        return f'a[{160+4*i}:{163+4*i}]' if i < 14 else f'v[{16+4*(i-14)}:{19+4*(i-14)}]'
    tail = [dma_q(c, t) for c in range(5) for t in range(4)]
    gemm16(4, 14, 216, HB, LSTRIDE + XIN, LSTRIDE + SIN, 4, dn_wreg, dn_xreg, 208, 's34', tail, 'dn')
    fstamp('P_end')
    fflush()
    k('s_add_u32 s20, s20, 1'); k(f's_add_u32 s19, s19, {LSTRIDE}'); k(f's_add_u32 s21, s21, {5*FLAG_SLOT}')
    k.settle()
    k('s_cmp_lt_u32 s20, 2'); k('s_cbranch_scc1 LAYER_LOOP')
    k.label(L_end)
    return k.text()
```

```python
T = 2048; D = 640; H = 32; DH = 20; F = 1728
def al(x, a=4096): return (x + a - 1) // a * a

FLAGS = 0
FLAG_SLOT = 8 * 128
CLAIM = 12288
off = 16384
QFLAG = off; off += 65536
TS = off; off += 65536
WP32 = off; off = al(off + 168 * 40960)
CSP = off; off = al(off + 10 * 168 * 32 * 4)
WOP = off; off = al(off + 8 * 20 * 5 * 1024)
WDP = off; off = al(off + 8 * 54 * 5 * 1024)
LBASE = off
o = 0
XIN = o; o = al(o + T * D * 2)
SIN = o; o = al(o + 8 * T * 8)
HSQ = 128 * 768
HSK = 129 * 768
VBLK = 1280
HSV = 65 * VBLK
QP = o; o = al(o + H * HSQ)
KP = o; o = al(o + H * HSK)
VP = o; o = al(o + H * HSV)
OB = o; o = al(o + T * D * 2)
XMID = o; o = al(o + T * D * 2)
SMID = o; o = al(o + 8 * T * 8)
HB = o; o = al(o + T * F * 2)
LSTRIDE = o
WS_USED = LBASE + 2 * LSTRIDE + al(T * D * 2) + al(8 * T * 8)
OOB = 0x40000000
assert WS_USED < OOB
GU_START = [min(7 * g, 101) for g in range(16)]
if __name__ == '__main__':
    for n in 'WP32 CSP WOP WDP LBASE XIN SIN QP KP VP OB XMID SMID HB LSTRIDE WS_USED'.split():
        print(n, hex(globals()[n]), globals()[n])
```

```python
import sys
sys.path.insert(0, 'dev')
from asmlib import *
from gen_k0 import gen_k0, K0_GRID
import gen_main2 as gm
def build(path, fine=None, local=True, ld='sc1'):
    class O: pass
    O.fine = fine; O.local = local; O.ld = ld
    b0, vg, sg = gen_k0()
    bm = gm.gen_main(O)
    launches = [('prep_kernel', K0_GRID, 256, 0), ('main_kernel', 256, 256, gm.LDS_BYTES)]
    ks = {'prep_kernel': (b0, vg, sg, vg), 'main_kernel': (bm, 512, 96, 256)}
    open(path, 'w').write(make_file(launches, ks))
    if fine: open(path + '.names', 'w').write(','.join(O.fine_names))
if __name__ == '__main__':
    a = sys.argv
    out = a[1] if len(a) > 1 else 'interleave_layers__sliding_block__glu_gated_geglu__prompt.s'
    build(out, fine=a[a.index('fine')+1] if 'fine' in a else None, local='nolocal' not in a, ld=a[a.index('ld')+1] if 'ld' in a else 'sc1')
```
